```python
import torch

def _softmax(x, axis=-1):
    return torch.softmax(x, dim=axis)
def _gelu(x):
    return torch.nn.functional.gelu(x, approximate="tanh")
def _silu(x):
    return torch.nn.functional.silu(x)
def _sigmoid(x):
    return torch.sigmoid(x)
def _layernorm(x, axis=-1, eps=1e-5):
    m = x.mean(dim=axis, keepdim=True)
    v = x.var(dim=axis, keepdim=True, unbiased=False)
    return (x - m) / torch.sqrt(v + eps)
def _scatter_add(tgt, idx, src, axis=0):
    return tgt.clone().index_add_(axis, idx, src)
def _segment_sum(src, seg, n):
    out = torch.zeros((n,) + src.shape[1:], dtype=src.dtype)
    return out.index_add_(0, seg, src)
def _pad(x, pw):
    flat = tuple(v for pair in reversed(pw) for v in pair)
    return torch.nn.functional.pad(x, flat)

kernel_name = 'gated_mix__compressed_kv_cla__dense_activation_silu__decode'

def setup_inputs():

    _w = (lambda a: (lambda t: t.to(torch.bfloat16) if t.is_floating_point() else t)(torch.as_tensor(a)))
    def _A_setup():
        B, H, Sq, Sk, D, M = 1, 32, 1, 8192, 128, 512
        Dc = 4 * D
        return {
            "x": _w((lambda *s: torch.randn(*s, dtype=torch.bfloat16) * 0.05)(B, Sq, M)),
            "c_kv": _w((lambda *s: torch.randn(*s, dtype=torch.bfloat16) * 0.8)(B, Sk, Dc)),
            "w_q": _w((lambda *s: torch.randn(*s, dtype=torch.bfloat16) * 6.4)(M, H, D) * (M ** -0.5)),
            "w_uk": _w((lambda *s: torch.randn(*s, dtype=torch.bfloat16) * 6.4)(Dc, H, D) * (Dc ** -0.5)),
            "w_uv": _w((lambda *s: torch.randn(*s, dtype=torch.bfloat16) * 0.8)(Dc, H, D) * (Dc ** -0.5)),
            "w_o": _w((lambda *s: torch.randn(*s, dtype=torch.bfloat16) * 0.8)(H, D, M) * ((H * D) ** -0.5)),
        }
    _A_in = _A_setup()

    def _B_setup():
        B, S, D, F = 1, 1, 512, 1376
        return {
            "x": _w((lambda *s: torch.randn(*s, dtype=torch.bfloat16) * 0.05)(B, S, D)),
            "w1": _w((lambda *s: torch.randn(*s, dtype=torch.bfloat16) * 12.8)(D, F) * (D ** -0.5)),
            "w2": _w((lambda *s: torch.randn(*s, dtype=torch.bfloat16) * 0.1)(F, D) * (F ** -0.5)),
        }
    _B_in = _B_setup()

    return {
        "A_x": _A_in["x"],
        "A_c_kv": _A_in["c_kv"],
        "A_w_q": _A_in["w_q"],
        "A_w_uk": _A_in["w_uk"],
        "A_w_uv": _A_in["w_uv"],
        "A_w_o": _A_in["w_o"],
        "B_x": _B_in["x"],
        "B_w1": _B_in["w1"],
        "B_w2": _B_in["w2"],
        "gate_w": _w((lambda *s: torch.randn(*s, dtype=torch.bfloat16) * 0.05)(512) * 16.0),
    }

def reference(A_x, A_c_kv, A_w_q, A_w_uk, A_w_uv, A_w_o, B_x, B_w1, B_w2, gate_w):
    def _A_ref(x, c_kv, w_q, w_uk, w_uv, w_o):
        B, Sq, M = x.shape[0], x.shape[1], x.shape[2]
        Sk = c_kv.shape[1]
        H, D = w_q.shape[1], w_q.shape[2]
        q = torch.einsum("bqm,mhd->bhqd", x, w_q)
        k = torch.einsum("bkc,chd->bhkd", c_kv, w_uk)
        v = torch.einsum("bkc,chd->bhkd", c_kv, w_uv)
        scores = torch.einsum("bhqd,bhkd->bhqk", q, k) * (D ** -0.5)
        off = Sk - Sq
        qi = torch.arange(Sq)[:, None]
        kj = torch.arange(Sk)[None, :]
        cmask = kj <= (qi + off)
        scores = torch.where(cmask[None, None], scores, -1e9)
        p = _softmax(scores, axis=-1)
        ctx = torch.einsum("bhqk,bhkd->bhqd", p, v)
        return torch.einsum("bhqd,hdm->bqm", ctx, w_o)

    def _B_ref(x, w1, w2):
        h = torch.einsum("bsd,df->bsf", x, w1)
        h = _silu(h)
        out = torch.einsum("bsf,fd->bsd", h, w2)
        return out

    x = A_x
    g = _sigmoid((x * gate_w).sum(-1, keepdims=True))
    a = _A_ref(x, A_c_kv, A_w_q, A_w_uk, A_w_uv, A_w_o)
    b = _B_ref(x, B_w1, B_w2)
    return g * a + (1 - g) * b
```

```python
import re

TRANS = ("v_exp_f32", "v_log_f32", "v_rcp_f32", "v_rsq_f32", "v_sqrt_f32", "v_sin_f32", "v_cos_f32")


def vr(b, n=1):
    return f"v{b}" if n == 1 else f"v[{b}:{b + n - 1}]"


def sr(b, n=1):
    return f"s{b}" if n == 1 else f"s[{b}:{b + n - 1}]"


def _regs(tok):
    tok = tok.strip().lstrip("-").strip("|")
    m = re.fullmatch(r"([vsa])(\d+)", tok)
    if m:
        return {(m.group(1), int(m.group(2)))}
    m = re.fullmatch(r"([vsa])\[(\d+):(\d+)\]", tok)
    if m:
        return {(m.group(1), i) for i in range(int(m.group(2)), int(m.group(3)) + 1)}
    if tok == "vcc":
        return {("s", "vcc")}
    if tok == "m0":
        return {("s", "m0")}
    if tok == "exec":
        return {("s", "exec")}
    return set()


class Ins:
    def __init__(self, text):
        self.text = text
        body = text.split(";")[0].strip()
        parts = body.split(None, 1)
        self.op = parts[0]
        rest = parts[1] if len(parts) > 1 else ""
        raw = re.split(r",(?![^\[]*\])", rest)
        ops = []
        mods = ""
        for k, t in enumerate(raw):
            t = t.strip()
            if k == len(raw) - 1:
                w = t.split(None, 1)
                if w:
                    ops.append(w[0])
                    mods = w[1] if len(w) > 1 else ""
            else:
                ops.append(t)
        self.ops = ops
        self.mods = mods
        op = self.op
        R = [_regs(t) for t in ops]
        un = lambda xs: set().union(*xs) if xs else set()
        self.mfma = op.startswith("v_mfma") or op.startswith("v_smfmac")
        self.valu = op.startswith("v_") and not self.mfma
        self.dpp = "_dpp" in op or any(k in mods for k in ("quad_perm", "row_", "wave_"))
        self.perml = op.startswith("v_permlane")
        self.rdlane = op.startswith("v_readlane") or op.startswith("v_readfirstlane")
        self.trans = op.startswith(TRANS)
        self.dot = op.startswith("v_dot")
        self.ds = op.startswith("ds_")
        self.vmem = op.startswith("buffer_") or op.startswith("global_")
        self.lds_dma = self.vmem and (re.search(r"\blds\b", mods) is not None or "load_lds" in op)
        self.salu = op.startswith("s_")
        self.srcC = set()
        self.srcAB = set()
        self.wide_store = False
        self.passes = 0
        if self.mfma:
            self.defs = R[0]
            if op.startswith("v_smfmac"):
                self.srcAB = R[1] | R[2] | R[3]
                self.srcC = R[0]
            else:
                self.srcAB = R[1] | R[2]
                self.srcC = R[3]
            self.uses = self.srcAB | self.srcC
            self.passes = 8 if "32x32" in op else 4
        elif self.perml:
            self.defs = R[0] | R[1]
            self.uses = R[0] | R[1]
        elif self.valu:
            self.defs = set(R[0])
            self.uses = un(R[1:])
            if "_co_" in op:
                self.defs |= R[1]
                self.uses = un(R[2:])
            if any(k in op for k in ("fmac", "dot2c", "writelane", "v_mac")) or self.dpp or "sdwa" in op:
                self.uses |= R[0]
        elif self.ds:
            if "read" in op or "permute" in op or "_rtn" in op:
                self.defs = R[0]
                self.uses = un(R[1:])
            else:
                self.defs = set()
                self.uses = un(R)
        elif self.vmem:
            if "load" in op and not self.lds_dma:
                self.defs = R[0]
                self.uses = un(R[1:])
            else:
                self.defs = set()
                self.uses = un(R)
                if self.lds_dma:
                    self.uses |= {("s", "m0")}
            if "store" in op and ("x4" in op or "x3" in op):
                self.wide_store = True
                self.sdata = R[0] if op.startswith("buffer_") else R[1]
        else:
            nodef = ("s_cmp", "s_waitcnt", "s_barrier", "s_nop", "s_branch", "s_cbranch", "s_endpgm",
                     "s_setprio", "s_sleep", "s_bitcmp")
            if op.startswith(nodef):
                self.defs = set()
                self.uses = un(R)
            else:
                self.defs = R[0] if R else set()
                self.uses = un(R[1:])
        self.states = 1
        if op == "s_nop":
            self.states = int(ops[0], 0) + 1


def _need(p, c):
    n = 0
    vdef = {r for r in p.defs if r[0] != "s"}
    sdef = {r for r in p.defs if r[0] == "s"}
    if p.valu:
        if c.mfma and vdef & c.uses:
            n = max(n, 2)
        if c.valu and (c.dpp or c.perml) and vdef & c.uses:
            n = max(n, 2)
        if c.rdlane and vdef & c.uses:
            n = max(n, 1)
        if p.trans and c.valu and vdef & c.uses:
            n = max(n, 1)
        if ("sdwa" in p.op or "op_sel" in p.mods) and c.valu and vdef & (c.uses | c.defs):
            n = max(n, 1)
        if p.dot and (c.valu or c.mfma or c.ds or c.vmem) and vdef & (c.uses | c.defs):
            chain = c.op == p.op and not (vdef & (_regs(c.ops[1]) | _regs(c.ops[2])))
            if not chain:
                n = max(n, 3)
        if sdef:
            cu = set(c.uses)
            if c.op.startswith("v_cndmask") and len(c.ops) == 3:
                cu |= {("s", "vcc")}
            if c.valu and sdef & cu:
                n = max(n, 4 if (c.rdlane or "writelane" in c.op) else 2)
            if c.vmem and sdef & cu:
                n = max(n, 5)
    if p.mfma:
        big = 12 if p.passes == 8 else 8
        if c.mfma:
            if p.defs & c.srcAB:
                n = max(n, big)
            if p.defs & c.srcC and not (p.defs == c.srcC and p.passes == c.passes):
                n = max(n, big - 2)
            if p.defs & c.defs and not (p.defs & c.srcC):
                n = max(n, big)
        elif (c.valu or c.ds or c.vmem) and p.defs & (c.uses | c.defs):
            n = max(n, big)
        if c.valu and p.srcC & c.defs:
            n = max(n, 7 if p.passes == 8 else 3)
    if p.wide_store and p.sdata & c.defs:
        n = max(n, 2)
    if p.salu and ("s", "m0") in p.defs and c.lds_dma:
        n = max(n, 1)
    return n


class Asm:
    def __init__(self):
        self.lines = []
        self.hist = []
        self.vm = []
        self.lg = []
        self.nops = 0
        self.count = 0

    def raw(self, text):
        self.lines.append(text)

    def comment(self, text):
        self.lines.append(f"    ; {text}")

    def label(self, name):
        self.lines.append(f"{name}:")

    def fresh(self):
        self.hist = []
        self.vm = []
        self.lg = []

    def __call__(self, text, tag=None):
        c = Ins(text)
        dist = 0
        pad = 0
        for p in reversed(self.hist):
            pad = max(pad, _need(p, c) - dist)
            dist += p.states
            if dist >= 20:
                break
        if pad > 0:
            nop = Ins(f"s_nop {pad - 1}")
            self.lines.append(f"    s_nop {pad - 1}")
            self.hist.append(nop)
            self.nops += pad
        self.lines.append("    " + text)
        self.hist.append(c)
        self.hist = self.hist[-24:]
        self.count += 1
        if c.vmem:
            self.vm.append(tag)
        if c.ds:
            self.lg.append(tag)

    def _n_after(self, q, tag):
        idx = [i for i, t in enumerate(q) if t == tag]
        if not idx:
            return None
        return len(q) - 1 - idx[-1]

    def wait(self, vm=None, lg=None):
        parts = []
        if vm is not None:
            n = 0 if vm == "all" else self._n_after(self.vm, vm)
            if n is not None:
                n = min(n, 62)
                parts.append(f"vmcnt({n})")
                self.vm = self.vm[len(self.vm) - n:] if n else []
        if lg is not None:
            n = 0 if lg == "all" else self._n_after(self.lg, lg)
            if n is not None:
                n = min(n, 14)
                parts.append(f"lgkmcnt({n})")
                self.lg = self.lg[len(self.lg) - n:] if n else []
        if parts:
            self("s_waitcnt " + " ".join(parts))

    def text(self):
        return "\n".join(self.lines) + "\n"
```

```python
import math
import os
import struct
import sys

sys.path.insert(0, os.path.dirname(os.path.abspath(__file__)))
from asmlib import Asm, vr, sr

NAME = "gated_mix__compressed_kv_cla__dense_activation_silu__decode"

DEFAULTS = dict(
    stamps=0,
    nt=1,
    tail="B2",
    b0="wuk",
    npoll=20000,
)

H2 = 0x0
ML = 0x20000
H5 = 0x28000
EPOCH = 0xA8000
H3 = 0xB0000
DBG = 0x3B0000
WS_BYTES = 0x3D0000
OOB = 0x40000000

CROW = 1056
CKV = 0
QA = 128 * CROW
QP = QA + 128 * 160
PB = QP + 8 * 160
ZR = PB + 128
MX = PB + 4096
FH = MX + 128
CX = FH + 128
ML2 = CX + 4 * 160
RD = ML2 + 32
DUMMY = RD + 256
LDS_BYTES = DUMMY + 64

LOG2E = math.log2(math.e)


def f32(x):
    return "0x%08x" % struct.unpack("<I", struct.pack("<f", x))[0]


S_W = 3
SX, SWQ, SWUK, SWS, SCKV, SWUV, SWO, SW1, SW2, SG, SOUT = 4, 8, 12, 16, 20, 24, 28, 32, 36, 40, 44
S_K8 = 48
S_128K, S_192K, S_4K, S_36K = 64, 65, 66, 67
S_X, S_J, S_GAM, S_H, S_DH, S_CQ, S_KC, S_T = 68, 69, 70, 71, 72, 73, 74, 75
S_TAG = 76
S_E = 78
S_T2 = 79
S_TG5 = 80
S_CNT = 84
S_HD = 85
S_P0, S_P1 = 86, 88


def srd(b):
    return sr(b, 4)


def build(opt):
    o = dict(DEFAULTS)
    o.update(opt)
    e = Asm()
    NT = " nt" if o["nt"] else ""
    MF = "v_mfma_f32_16x16x32_bf16"

    stamp_regs = []
    stamp_used = []

    def stamps_begin(regs):
        stamp_regs[:] = regs
        stamp_used[:] = []
        if o["stamps"]:
            e.comment("stampbegin")

    def stamp(name):
        if not o["stamps"]:
            return
        r = stamp_regs[len(stamp_used)]
        stamp_used.append(r)
        e(f"s_memrealtime {sr(r, 2)}")

    def stamps_flush(wave_add, setname):
        if not o["stamps"]:
            return
        e("s_waitcnt lgkmcnt(0)")
        e("v_mov_b32 v1, 0")
        for k, r in enumerate(stamp_used):
            e(f"v_writelane_b32 v1, {sr(r)}, {k}")
        e(f"v_writelane_b32 v1, {sr(S_CNT)}, 15")
        e(f"s_lshl_b32 {sr(S_T)}, s2, 3")
        e(f"s_add_u32 {sr(S_T)}, {sr(S_T)}, {sr(S_W)}")
        e(f"s_add_u32 {sr(S_T)}, {sr(S_T)}, {wave_add}")
        e(f"s_lshl_b32 {sr(S_T)}, {sr(S_T)}, 6")
        e(f"s_add_u32 {sr(S_T)}, {sr(S_T)}, {DBG}")
        e(f"v_lshl_add_u32 v2, v0, 2, {sr(S_T)}")
        e(f"v_mov_b32 v3, {OOB}")
        e("v_cmp_gt_u32 vcc, 16, v0")
        e("v_cndmask_b32 v2, v3, v2, vcc")
        e(f"buffer_store_dword v1, v2, {srd(SWS)}, 0 offen")

    def set_srd(b, nbytes):
        e(f"s_mov_b32 {sr(b + 2)}, {nbytes}")
        e(f"s_mov_b32 {sr(b + 3)}, 0x00020000")

    def make_tags():
        e(f"s_not_b32 {sr(S_TAG)}, {sr(S_E)}")
        e(f"s_mul_i32 {sr(S_TAG + 1)}, {sr(S_E)}, 0x9E3779B1")
        e(f"s_add_u32 {sr(S_TAG + 1)}, {sr(S_TAG + 1)}, 0x7F4A7C15")
        e(f"s_and_b32 {sr(S_TG5)}, {sr(S_TAG)}, 0xfff")
        e(f"s_lshr_b32 {sr(S_TG5 + 1)}, {sr(S_TAG + 1)}, 20")
        e(f"s_bfe_u32 {sr(S_TG5 + 2)}, {sr(S_TAG + 1)}, 0xc0008")
        e(f"s_bfe_u32 {sr(S_TG5 + 3)}, {sr(S_TAG)}, 0xc000c")

    def allred_g(op, v, t):
        e(f"v_mov_b32 {vr(t)}, {vr(v)}")
        e(f"v_permlane16_swap_b32 {vr(v)}, {vr(t)}")
        e(f"{op} {vr(v)}, {vr(v)}, {vr(t)}")
        e(f"v_mov_b32 {vr(t)}, {vr(v)}")
        e(f"v_permlane32_swap_b32 {vr(v)}, {vr(t)}")
        e(f"{op} {vr(v)}, {vr(v)}, {vr(t)}")

    def sigmoid(dst, z, t):
        e(f"v_mul_f32 {vr(t)}, {f32(-LOG2E)}, {vr(z)}")
        e(f"v_exp_f32 {vr(t)}, {vr(t)}")
        e(f"v_add_f32 {vr(t)}, 1.0, {vr(t)}")
        e(f"v_rcp_f32 {vr(dst)}, {vr(t)}")

    FULL = "row_mask:0xf bank_mask:0xf"

    e("s_cmp_ge_u32 s2, 0x100")
    e("s_cbranch_scc1 L_end")
    e("v_lshrrev_b32 v1, 6, v0")
    e("v_and_b32 v0, 63, v0")
    e(f"v_readfirstlane_b32 {sr(S_W)}, v1")
    e(f"s_load_dwordx2 {sr(SWS, 2)}, s[0:1], 96")
    e(f"s_and_b32 {sr(S_X)}, s2, 7")
    e(f"s_bfe_u32 {sr(S_J)}, s2, 0x30003")
    e(f"s_lshr_b32 {sr(S_GAM)}, s2, 6")
    e(f"s_lshl3_add_u32 {sr(S_H)}, {sr(S_GAM)}, {sr(S_X)}")
    e(f"s_and_b32 {sr(S_DH)}, {sr(S_J)}, 1")
    e(f"s_lshr_b32 {sr(S_CQ)}, {sr(S_J)}, 1")
    set_srd(SWS, WS_BYTES)
    e(f"s_mov_b32 {sr(S_CNT)}, 0")
    e(f"s_cmp_ge_u32 {sr(S_W)}, 4")
    e("s_cbranch_scc1 L_attn")

    stamps_begin([20, 22, 44, 46, 90, 92, 94, 96, 98, 100, 48, 50, 54, 58, 60])
    L3, N7, G, N = 1, 2, 3, 4
    A0, A1, A2, A3, A4, A5, T0, T1, T2, T3 = 5, 6, 7, 8, 9, 10, 11, 12, 13, 14
    V_QPW, V_QR1, V_QR2, V_H2O, V_FHW = 15, 16, 17, 18, 19
    VX, SEL, VAF, VWQ, VWUK = 20, 28, 36, 100, 164
    VGX, VGW, VW1, VFX, VW2 = 180, 184, 188, 196, 200
    VQD, VQB, VD2, VST = 208, 212, 228, 232
    VGATE, V_WUVO, V_WOO = 244, 245, 246
    VFF = 240
    V_W2O = 197

    e(f"s_load_dwordx2 {sr(SX, 2)}, s[0:1], 0")
    e(f"s_load_dwordx2 {sr(SWQ, 2)}, s[0:1], 16")
    e(f"s_load_dwordx2 {sr(SWUK, 2)}, s[0:1], 24")
    e(f"s_load_dwordx2 {sr(SW1, 2)}, s[0:1], 56")
    e(f"s_load_dwordx2 {sr(SW2, 2)}, s[0:1], 64")
    e(f"s_load_dwordx2 {sr(SG, 2)}, s[0:1], 72")
    set_srd(SX, 1024)
    set_srd(SWQ, 4 << 20)
    set_srd(SWUK, 4 << 20)
    for i in range(16):
        e(f"s_mov_b32 {sr(S_K8 + i)}, {i * 8192}")
    e(f"v_lshrrev_b32 {vr(L3)}, 3, v0")
    e(f"v_and_b32 {vr(N7)}, 7, v0")
    e(f"v_lshrrev_b32 {vr(G)}, 4, v0")
    e(f"v_and_b32 {vr(N)}, 15, v0")
    e(f"s_lshl_b32 {sr(S_HD)}, {sr(S_H)}, 8")
    e(f"s_lshl_b32 {sr(S_T)}, {sr(S_DH)}, 7")
    e(f"s_add_u32 {sr(S_HD)}, {sr(S_HD)}, {sr(S_T)}")
    e(f"s_lshl_b32 {sr(S_T)}, {sr(S_W)}, 8")
    e(f"v_lshl_add_u32 {vr(A0)}, {vr(L3)}, 5, {sr(S_T)}")
    e(f"v_lshl_add_u32 {vr(A4)}, v0, 2, {sr(S_T)}")
    e(f"s_lshl_b32 {sr(S_T)}, {sr(S_W)}, 20")
    e(f"s_add_u32 {sr(S_T)}, {sr(S_T)}, {sr(S_HD)}")
    e(f"v_lshl_add_u32 {vr(A1)}, {vr(L3)}, 17, {sr(S_T)}")
    e(f"v_lshl_add_u32 {vr(A1)}, {vr(N7)}, 4, {vr(A1)}")
    e(f"s_lshl2_add_u32 {sr(S_T)}, {sr(S_CQ)}, {sr(S_W)}")
    e(f"s_lshl_b32 {sr(S_T)}, {sr(S_T)}, 18")
    e(f"s_add_u32 {sr(S_T2)}, {sr(S_T)}, {sr(S_HD)}")
    e(f"v_lshl_add_u32 {vr(A2)}, {vr(N)}, 13, {sr(S_T2)}")
    e(f"v_lshl_add_u32 {vr(A2)}, {vr(G)}, 4, {vr(A2)}")
    e(f"v_lshl_add_u32 {vr(V_WUVO)}, {vr(L3)}, 13, {sr(S_T2)}")
    e(f"v_lshl_add_u32 {vr(V_WUVO)}, {vr(N7)}, 4, {vr(V_WUVO)}")
    e(f"s_mov_b32 {sr(S_128K)}, 0x20000")
    e("s_waitcnt lgkmcnt(0)")
    stamp("start")
    if o["b0"] == "pre":
        e("s_barrier   ; B0")
    e(f"buffer_load_dwordx4 {vr(VX, 4)}, {vr(A0)}, {srd(SX)}, 0 offen", "x")
    e(f"buffer_load_dwordx4 {vr(VX + 4, 4)}, {vr(A0)}, {srd(SX)}, 0 offen offset:16", "x")
    for i in range(16):
        e(f"buffer_load_dwordx4 {vr(VWQ + 4 * i, 4)}, {vr(A1)}, {srd(SWQ)}, {sr(S_K8 + i)} offen{NT}", f"wq{i}")
    if o["b0"] == "wq":
        e("s_barrier   ; B0")
    for t in range(2):
        for s in range(2):
            so = sr(S_128K) if t else "0"
            e(f"buffer_load_dwordx4 {vr(VWUK + 8 * t + 4 * s, 4)}, {vr(A2)}, {srd(SWUK)}, {so} offen offset:{64 * s}{NT}", "wuk")
    if o["b0"] == "wuk":
        e("s_barrier   ; B0")
    stamp("iss")
    e(f"s_load_dword {sr(S_E)}, {sr(SWS, 2)}, {EPOCH}")
    e(f"s_load_dwordx2 {sr(SWUV, 2)}, s[0:1], 32")
    e(f"s_load_dwordx2 {sr(SWO, 2)}, s[0:1], 40")
    set_srd(SW1, 512 * 2752)
    set_srd(SW2, 1376 * 1024)
    set_srd(SG, 1024)
    set_srd(SWUV, 4 << 20)
    set_srd(SWO, 4 << 20)
    e(f"s_mov_b32 {sr(S_192K)}, 0x30000")
    e(f"s_mov_b32 {sr(S_4K)}, 0x1000")
    e(f"s_mov_b32 {sr(S_36K)}, 0x9000")
    e(f"s_lshr_b32 {sr(S_T)}, s2, 3")
    e(f"s_mul_i32 {sr(S_T2)}, {sr(S_X)}, 22")
    e(f"s_add_u32 {sr(S_T2)}, {sr(S_T2)}, {sr(S_T)}")
    e(f"s_cmp_lt_u32 {sr(S_T)}, 22")
    e(f"s_cselect_b32 {sr(S_T2)}, {sr(S_T2)}, 0x20000")
    e(f"s_cmp_lt_u32 {sr(S_T2)}, 172")
    e(f"s_cselect_b32 {sr(S_T2)}, {sr(S_T2)}, 0x20000")
    e(f"s_mul_i32 {sr(S_T)}, {sr(S_W)}, {128 * 2752}")
    e(f"s_lshl4_add_u32 {sr(S_T)}, {sr(S_T2)}, {sr(S_T)}")
    e(f"v_mul_u32_u24 {vr(A5)}, 5504, v0")
    e(f"v_add_u32 {vr(A5)}, {sr(S_T)}, {vr(A5)}")
    e(f"s_lshl_b32 {sr(S_T2)}, {sr(S_T2)}, 13")
    e(f"s_lshl_b32 {sr(S_T)}, {sr(S_W)}, 8")
    e(f"s_add_u32 {sr(S_T2)}, {sr(S_T2)}, {sr(S_T)}")
    e(f"v_lshl_add_u32 {vr(V_W2O)}, {vr(G)}, 10, {sr(S_T2)}")
    e(f"v_lshl_add_u32 {vr(V_W2O)}, {vr(N)}, 4, {vr(V_W2O)}")
    e(f"v_lshlrev_b32 {vr(A3)}, 4, v0")
    e(f"v_and_b32 {vr(T0)}, 1, v0")
    e(f"v_cmp_eq_u32 vcc, 1, {vr(T0)}")
    e(f"v_mov_b32 {vr(T0)}, 0x0c0c0100")
    e(f"v_mov_b32 {vr(T1)}, 0x01000c0c")
    e(f"v_cndmask_b32 {vr(T0)}, {vr(T0)}, {vr(T1)}, vcc")
    e(f"v_mov_b32 {vr(T1)}, 0x0c0c0302")
    e(f"v_mov_b32 {vr(T2)}, 0x03020c0c")
    e(f"v_cndmask_b32 {vr(T1)}, {vr(T1)}, {vr(T2)}, vcc")
    e(f"v_mov_b32 {vr(T2)}, 0x0c0c0c0c")
    e(f"v_lshrrev_b32 {vr(T3)}, 1, {vr(N7)}")
    for t in range(4):
        e(f"v_cmp_eq_u32 vcc, {t}, {vr(T3)}")
        e(f"v_cndmask_b32 {vr(SEL + t)}, {vr(T2)}, {vr(T0)}, vcc")
        e(f"v_cndmask_b32 {vr(SEL + 4 + t)}, {vr(T2)}, {vr(T1)}, vcc")
    e(f"v_lshrrev_b32 {vr(T0)}, 3, {vr(N)}")
    e(f"s_mul_i32 {sr(S_T)}, {sr(S_W)}, 320")
    e(f"s_add_u32 {sr(S_T)}, {sr(S_T)}, {QP}")
    e(f"v_mul_u32_u24 {vr(T1)}, 160, {vr(T0)}")
    e(f"v_lshl_add_u32 {vr(T1)}, {vr(N7)}, 4, {vr(T1)}")
    e(f"v_and_b32 {vr(T2)}, 1, {vr(G)}")
    e(f"v_lshl_add_u32 {vr(T1)}, {vr(T2)}, 3, {vr(T1)}")
    e(f"v_add_u32 {vr(T1)}, {sr(S_T)}, {vr(T1)}")
    e(f"v_lshrrev_b32 {vr(T2)}, 5, v0")
    e(f"v_cmp_eq_u32 vcc, {vr(T0)}, {vr(T2)}")
    e(f"v_mov_b32 {vr(T2)}, {DUMMY}")
    e(f"v_cndmask_b32 {vr(V_QPW)}, {vr(T2)}, {vr(T1)}, vcc")
    e(f"v_mul_u32_u24 {vr(T1)}, 160, {vr(N7)}")
    e(f"v_lshl_add_u32 {vr(T1)}, {vr(G)}, 4, {vr(T1)}")
    e(f"v_add_u32 {vr(T1)}, {QP}, {vr(T1)}")
    e(f"v_mov_b32 {vr(T2)}, {ZR}")
    e(f"v_cmp_gt_u32 vcc, 8, {vr(N)}")
    e(f"v_cndmask_b32 {vr(V_QR1)}, {vr(T2)}, {vr(T1)}, vcc")
    e(f"v_cndmask_b32 {vr(V_QR2)}, {vr(T1)}, {vr(T2)}, vcc")
    e(f"s_lshl1_add_u32 {sr(S_T)}, {sr(S_H)}, {sr(S_DH)}")
    e(f"s_lshl2_add_u32 {sr(S_T)}, {sr(S_T)}, {sr(S_CQ)}")
    e(f"s_lshl2_add_u32 {sr(S_T)}, {sr(S_T)}, {sr(S_W)}")
    e(f"s_lshl_b32 {sr(S_T)}, {sr(S_T)}, 7")
    e(f"v_lshl_add_u32 {vr(T1)}, {vr(T0)}, 6, {sr(S_T)}")
    e(f"v_lshl_add_u32 {vr(T1)}, {vr(G)}, 4, {vr(T1)}")
    e(f"v_mov_b32 {vr(T2)}, {OOB}")
    e(f"v_cmp_eq_u32 vcc, 0, {vr(N7)}")
    e(f"v_cndmask_b32 {vr(V_H2O)}, {vr(T2)}, {vr(T1)}, vcc")
    assert H2 == 0
    e(f"s_lshl2_add_u32 {sr(S_T)}, {sr(S_W)}, {FH}")
    e(f"v_lshl_add_u32 {vr(V_FHW)}, {vr(G)}, 5, {sr(S_T)}")
    e(f"s_lshl1_add_u32 {sr(S_T)}, {sr(S_H)}, {sr(S_DH)}")
    e(f"s_lshl_b32 {sr(S_T)}, {sr(S_T)}, 16")
    e(f"s_lshl_b32 {sr(S_T2)}, {sr(S_W)}, 8")
    e(f"s_add_u32 {sr(S_T)}, {sr(S_T)}, {sr(S_T2)}")
    e(f"v_lshl_add_u32 {vr(V_WOO)}, {vr(G)}, 13, {sr(S_T)}")
    e(f"v_lshl_add_u32 {vr(V_WOO)}, {vr(N)}, 4, {vr(V_WOO)}")

    e.wait(vm="x")
    stamp("x")
    for i in range(16):
        for t in range(4):
            e(f"v_perm_b32 {vr(VAF + 4 * i + t)}, {vr(VX + i // 2)}, {vr(VX + i // 2)}, {vr(SEL + 4 * (i & 1) + t)}")
    e("s_waitcnt lgkmcnt(0)")
    make_tags()
    e(f"v_mov_b32 {vr(VST)}, {sr(S_TAG)}")
    e(f"v_mov_b32 {vr(VST + 1)}, {sr(S_TAG + 1)}")
    for i in range(16):
        e.wait(vm=f"wq{i}")
        c = vr(VQD, 4) if i else "0"
        e(f"{MF} {vr(VQD, 4)}, {vr(VAF + 4 * i, 4)}, {vr(VWQ + 4 * i, 4)}, {c}")
    e(f"v_cvt_pk_bf16_f32 {vr(T1)}, {vr(VQD)}, {vr(VQD + 1)}")
    e(f"v_cvt_pk_bf16_f32 {vr(T2)}, {vr(VQD + 2)}, {vr(VQD + 3)}")
    assert T1 % 2 == 0 and T2 == T1 + 1
    e(f"ds_write_b64 {vr(V_QPW)}, {vr(T1, 2)}")
    stamp("q")
    e(f"s_mov_b32 {sr(S_T)}, 0")
    e.label("L_sync1")
    for t in range(2):
        for s in range(2):
            e(f"ds_read_b128 {vr(VQB + 8 * t + 4 * s, 4)}, {vr(V_QR2 if t else V_QR1)} offset:{64 * s}")
    e(f"s_add_u32 {sr(S_T)}, {sr(S_T)}, 1")
    e.wait(lg="all")
    e(f"v_max3_u32 {vr(T0)}, {vr(VQB)}, {vr(VQB + 2)}, {vr(VQB + 4)}")
    e(f"v_max3_u32 {vr(T1)}, {vr(VQB + 6)}, {vr(VQB + 8)}, {vr(VQB + 10)}")
    e(f"v_max3_u32 {vr(T0)}, {vr(T0)}, {vr(VQB + 12)}, {vr(VQB + 14)}")
    e(f"v_max_u32 {vr(T0)}, {vr(T0)}, {vr(T1)}")
    e(f"v_cmp_eq_u32 vcc, -1, {vr(T0)}")
    e("s_cbranch_vccz L_got1")
    e(f"s_cmp_lt_u32 {sr(S_T)}, {o['npoll']}")
    e("s_cbranch_scc1 L_sync1")
    e.label("L_got1")
    e.wait(vm="wuk")
    for t in range(2):
        for s in range(2):
            c = vr(VD2, 4) if (t or s) else "0"
            e(f"{MF} {vr(VD2, 4)}, {vr(VWUK + 8 * t + 4 * s, 4)}, {vr(VQB + 8 * t + 4 * s, 4)}, {c}")
    for ctl in ("quad_perm:[1,0,3,2]", "quad_perm:[2,3,0,1]", "row_half_mirror"):
        for r in range(4):
            e(f"v_add_f32_dpp {vr(VD2 + r)}, {vr(VD2 + r)}, {vr(VD2 + r)} {ctl} {FULL}")
    for r in range(4):
        e(f"v_mul_f32 {vr(VD2 + r)}, {f32(LOG2E / math.sqrt(128.0))}, {vr(VD2 + r)}")
    e(f"v_cvt_pk_bf16_f32 {vr(VST + 2)}, {vr(VD2)}, {vr(VD2 + 1)}")
    e(f"v_cvt_pk_bf16_f32 {vr(VST + 3)}, {vr(VD2 + 2)}, {vr(VD2 + 3)}")
    e(f"buffer_store_dwordx4 {vr(VST, 4)}, {vr(V_H2O)}, {srd(SWS)}, 0 offen sc1", "st2")
    stamp("pub2")

    VWO, VWUV, VOT = VWQ, VWUK, VAF

    def tail_loads():
        e(f"buffer_load_dwordx4 {vr(VW1, 4)}, {vr(A5)}, {srd(SW1)}, 0 offen{NT}", "ffn")
        e(f"buffer_load_dwordx4 {vr(VW1 + 4, 4)}, {vr(A5)}, {srd(SW1)}, 0 offen offset:2752{NT}", "ffn")
        e(f"buffer_load_dwordx4 {vr(VGX, 4)}, {vr(A3)}, {srd(SX)}, 0 offen", "ffn")
        e(f"buffer_load_dwordx4 {vr(VGW, 4)}, {vr(A3)}, {srd(SG)}, 0 offen", "ffn")
        e(f"buffer_load_dword {vr(VFX)}, {vr(A4)}, {srd(SX)}, 0 offen", "ffn")
        for k in range(4):
            so = ["0", sr(S_K8 + 8), sr(S_128K), sr(S_192K)][k]
            e(f"buffer_load_dwordx4 {vr(VWUV + 4 * k, 4)}, {vr(V_WUVO)}, {srd(SWUV)}, {so} offen{NT}", "wuv")
        for s in range(2):
            for jj in range(8):
                so = ["0", sr(S_4K), sr(S_K8 + 4), sr(S_36K)][2 * s + jj // 4]
                e(f"buffer_load_dwordx4 {vr(VWO + 32 * s + 4 * jj, 4)}, {vr(V_WOO)}, {srd(SWO)}, {so} offen offset:{1024 * (jj & 3)}{NT}", f"wo{s}")
        e(f"buffer_load_dwordx4 {vr(VW2, 4)}, {vr(V_W2O)}, {srd(SW2)}, 0 offen{NT}", "w2")
        e(f"buffer_load_dwordx4 {vr(VW2 + 4, 4)}, {vr(V_W2O)}, {srd(SW2)}, {sr(S_4K)} offen{NT}", "w2")

    if o["tail"] == "pub":
        tail_loads()
    V_UVW, V_UVR, V_H3O, V_MLO, V_CXW, V_M2W, V_CR1, V_CR2, V_H5O = 247, 248, 249, 250, 251, 252, 253, 254, 255
    V_FHR, V_M2R, V_MXR, VTG, VMASK = A0, A1, A2, 232, 236
    e(f"s_mul_i32 {sr(S_T)}, {sr(S_W)}, {32 * 160}")
    e(f"s_add_u32 {sr(S_T)}, {sr(S_T)}, {QA}")
    e(f"v_mul_u32_u24 {vr(T0)}, 160, {vr(L3)}")
    e(f"v_lshl_add_u32 {vr(T0)}, {vr(N7)}, 4, {vr(T0)}")
    e(f"v_add_u32 {vr(V_UVW)}, {sr(S_T)}, {vr(T0)}")
    e(f"v_lshrrev_b32 {vr(T0)}, 2, v0")
    e(f"v_mul_u32_u24 {vr(T0)}, 160, {vr(T0)}")
    e(f"v_and_b32 {vr(T1)}, 3, v0")
    e(f"v_lshl_add_u32 {vr(T0)}, {vr(T1)}, 3, {vr(T0)}")
    e(f"v_add_u32 {vr(V_UVR)}, {QA}, {vr(T0)}")
    e(f"s_lshl2_add_u32 {sr(S_T)}, {sr(S_H)}, {sr(S_CQ)}")
    e(f"s_lshl2_add_u32 {sr(S_T)}, {sr(S_T)}, {sr(S_W)}")
    e(f"s_mul_i32 {sr(S_T)}, {sr(S_T)}, {16 * 384}")
    e(f"s_add_u32 {sr(S_T)}, {sr(S_T)}, {H3}")
    e(f"v_mul_u32_u24 {vr(V_H3O)}, 384, {vr(N)}")
    e(f"v_lshl_add_u32 {vr(V_H3O)}, {vr(G)}, 4, {vr(V_H3O)}")
    e(f"v_add_u32 {vr(V_H3O)}, {sr(S_T)}, {vr(V_H3O)}")
    e(f"s_lshl2_add_u32 {sr(S_T)}, {sr(S_GAM)}, {sr(S_W)}")
    e(f"s_lshl_b32 {sr(S_T)}, {sr(S_T)}, 11")
    e(f"s_lshl4_add_u32 {sr(S_T)}, {sr(S_X)}, {sr(S_T)}")
    e(f"s_add_u32 {sr(S_T)}, {sr(S_T)}, {ML}")
    e(f"v_lshl_add_u32 {vr(V_MLO)}, {vr(G)}, 9, {sr(S_T)}")
    e(f"v_lshl_add_u32 {vr(V_MLO)}, {vr(T1)}, 7, {vr(V_MLO)}")
    e(f"s_mul_i32 {sr(S_T)}, {sr(S_W)}, 160")
    e(f"s_add_u32 {sr(S_T)}, {sr(S_T)}, {CX}")
    e(f"v_lshl_add_u32 {vr(V_CXW)}, v0, 1, {sr(S_T)}")
    e(f"s_lshl2_add_u32 {sr(S_T)}, {sr(S_W)}, {ML2}")
    e(f"v_mov_b32 {vr(V_M2W)}, {sr(S_T)}")
    e(f"v_mov_b32 {vr(V_M2R)}, {ML2}")
    e(f"v_mov_b32 {vr(V_MXR)}, {MX}")
    e(f"v_mul_u32_u24 {vr(T0)}, 160, {vr(T1)}")
    e(f"v_lshl_add_u32 {vr(T0)}, {vr(G)}, 4, {vr(T0)}")
    e(f"v_add_u32 {vr(T0)}, {CX}, {vr(T0)}")
    e(f"v_mov_b32 {vr(T2)}, {ZR}")
    e(f"v_lshrrev_b32 {vr(T3)}, 2, {vr(N)}")
    e(f"v_cmp_eq_u32 vcc, 0, {vr(T3)}")
    e(f"v_cndmask_b32 {vr(V_CR1)}, {vr(T2)}, {vr(T0)}, vcc")
    e(f"v_cmp_eq_u32 vcc, 1, {vr(T3)}")
    e(f"v_cndmask_b32 {vr(V_CR2)}, {vr(T2)}, {vr(T0)}, vcc")
    e(f"s_lshl_b32 {sr(S_T)}, {sr(S_W)}, 17")
    e(f"s_lshl_b32 {sr(S_T2)}, s2, 6")
    e(f"s_add_u32 {sr(S_T)}, {sr(S_T)}, {sr(S_T2)}")
    e(f"s_add_u32 {sr(S_T)}, {sr(S_T)}, {H5}")
    e(f"v_lshrrev_b32 {vr(T0)}, 1, {vr(N)}")
    e(f"v_lshl_add_u32 {vr(T0)}, {vr(T0)}, 14, {sr(S_T)}")
    e(f"v_and_b32 {vr(T1)}, 1, v0")
    e(f"v_lshl_add_u32 {vr(T0)}, {vr(T1)}, 5, {vr(T0)}")
    e(f"v_lshl_add_u32 {vr(T0)}, {vr(G)}, 4, {vr(T0)}")
    e(f"v_mov_b32 {vr(T2)}, {OOB}")
    e("v_cmp_gt_u32 vcc, 32, v0")
    e(f"v_cndmask_b32 {vr(V_H5O)}, {vr(T2)}, {vr(T0)}, vcc")
    e(f"v_lshlrev_b32 {vr(V_FHR)}, 5, {vr(G)}")
    e(f"v_add_u32 {vr(V_FHR)}, {FH}, {vr(V_FHR)}")
    e(f"v_mov_b32 {vr(VMASK)}, 0xfffff000")
    e.wait(lg="all")
    e("s_barrier   ; B2")
    stamp("B2")
    if o["tail"] == "B2":
        tail_loads()
    stamp("tail")
    e.wait(vm="ffn")
    FA = VQD
    FP = VQD + 8
    e(f"s_mov_b32 {sr(S_P0)}, 0x05040100")
    e(f"s_mov_b32 {sr(S_P0 + 1)}, 0x07060302")
    for t in range(4):
        e(f"v_perm_b32 {vr(FP + 2 * t)}, {vr(VW1 + 4 + t)}, {vr(VW1 + t)}, {sr(S_P0)}")
        e(f"v_perm_b32 {vr(FP + 2 * t + 1)}, {vr(VW1 + 4 + t)}, {vr(VW1 + t)}, {sr(S_P0 + 1)}")
    for f in range(8):
        e(f"v_dot2_f32_bf16 {vr(FA + f)}, {vr(FP + f)}, {vr(VFX)}, 0")
    for t in range(4):
        c = vr(VGATE) if t else "0"
        e(f"v_dot2_f32_bf16 {vr(VGATE)}, {vr(VGX + t)}, {vr(VGW + t)}, {c}")
    for f in (0, 1, 4, 5):
        e(f"v_permlane32_swap_b32 {vr(FA + f)}, {vr(FA + f + 2)}")
    for f in (0, 1, 4, 5):
        e(f"v_add_f32 {vr(FA + f)}, {vr(FA + f)}, {vr(FA + f + 2)}")
    for f in (0, 4):
        e(f"v_permlane16_swap_b32 {vr(FA + f)}, {vr(FA + f + 1)}")
    for f in (0, 4):
        e(f"v_add_f32 {vr(FA + f)}, {vr(FA + f)}, {vr(FA + f + 1)}")
    for rot in (8, 4, 2, 1):
        for v in (FA, FA + 4, VGATE):
            e(f"v_add_f32_dpp {vr(v)}, {vr(v)}, {vr(v)} row_ror:{rot} {FULL}")
    e(f"ds_write2_b32 {vr(V_FHW)}, {vr(FA)}, {vr(FA + 4)} offset0:0 offset1:4")
    allred_g("v_add_f32", VGATE, T0)
    sigmoid(VGATE, VGATE, T0)
    e(f"s_mov_b32 {sr(S_T)}, 0")
    e.label("L_sync5")
    e(f"ds_read_b128 {vr(FP, 4)}, {vr(V_MXR)}")
    e(f"s_add_u32 {sr(S_T)}, {sr(S_T)}, 1")
    e.wait(lg="all")
    e(f"v_max3_u32 {vr(T0)}, {vr(FP)}, {vr(FP + 1)}, {vr(FP + 2)}")
    e(f"v_max_u32 {vr(T0)}, {vr(T0)}, {vr(FP + 3)}")
    e(f"v_cmp_eq_u32 vcc, -1, {vr(T0)}")
    e("s_cbranch_vccz L_got5a")
    e(f"s_cmp_lt_u32 {sr(S_T)}, {o['npoll']}")
    e("s_cbranch_scc1 L_sync5")
    e.label("L_got5a")
    e.wait(vm="wuv")
    for k in range(4):
        e(f"ds_write_b128 {vr(V_UVW)}, {vr(VWUV + 4 * k, 4)} offset:{1280 * k}")
    for s in range(2):
        e.wait(vm=f"wo{s}")
        for i in range(8):
            for t in range(4):
                lo = VWO + 32 * s + 4 * (2 * t) + i // 2
                hi = VWO + 32 * s + 4 * (2 * t + 1) + i // 2
                e(f"v_perm_b32 {vr(VOT + 32 * s + 4 * i + t)}, {vr(hi)}, {vr(lo)}, {sr(S_P0 + (i & 1))}")
    e.wait(lg="all")
    e("s_barrier   ; B5")
    stamp("B5")
    e(f"ds_read_b128 {vr(FA, 4)}, {vr(V_FHR)}", "fh")
    e(f"ds_read_b128 {vr(FA + 4, 4)}, {vr(V_FHR)} offset:16", "fh")
    VUB = VWO
    for it in range(4):
        for u in range(4):
            for a in range(2):
                e(f"ds_read_b64_tr_b16 {vr(VUB + 16 * it + 4 * u + 2 * a, 2)}, {vr(V_UVR)} offset:{(32 * u + 16 * a) * 160 + 32 * it}")
    e.wait(lg="fh", vm="w2")
    for s in range(2):
        b = FA + 4 * s
        e(f"v_add_f32 {vr(b)}, {vr(b)}, {vr(b + 1)}")
        e(f"v_add_f32 {vr(b + 2)}, {vr(b + 2)}, {vr(b + 3)}")
        e(f"v_add_f32 {vr(b)}, {vr(b)}, {vr(b + 2)}")
        sigmoid(b + 1, b, b + 1)
        e(f"v_mul_f32 {vr(b)}, {vr(b)}, {vr(b + 1)}")
    e(f"v_cvt_pk_bf16_f32 {vr(T0)}, {vr(FA)}, {vr(FA + 4)}")
    for t in range(8):
        e(f"v_perm_b32 {vr(FP + t)}, {vr(T0)}, {vr(T0)}, {vr(SEL + t)}")
    e(f"{MF} {vr(VFF, 4)}, {vr(FP, 4)}, {vr(VW2, 4)}, 0")
    e(f"{MF} {vr(VFF, 4)}, {vr(FP + 4, 4)}, {vr(VW2 + 4, 4)}, {vr(VFF, 4)}")
    e(f"v_sub_f32 {vr(T0)}, 1.0, {vr(VGATE)}")
    for r in range(4):
        e(f"v_mul_f32 {vr(VFF + r)}, {vr(T0)}, {vr(VFF + r)}")
    VGA, VMLG, VD1, VCA, VM2, VDO = 164, 188, 208, 192, 164, 208
    for r in range(4):
        e(f"v_mov_b32 {vr(VTG + r)}, {sr(S_TG5 + r)}")
    e.wait(lg="all", vm="all")
    e.label("L_poll3")
    e(f"buffer_load_dwordx4 {vr(VMLG, 4)}, {vr(V_MLO)}, {srd(SWS)}, 0 offen sc1")
    for u in range(6):
        e(f"buffer_load_dwordx4 {vr(VGA + 4 * u, 4)}, {vr(V_H3O)}, {srd(SWS)}, 0 offen offset:{64 * u} sc1")
    e(f"s_add_u32 {sr(S_CNT)}, {sr(S_CNT)}, 1")
    e.wait(vm="all")
    e(f"v_cmp_ne_u64 vcc, {sr(S_TAG, 2)}, {vr(VMLG, 2)}")
    for u in range(4):
        e(f"v_cmp_ne_u32 {sr(S_P1, 2)}, {sr(S_TAG)}, {vr(VGA + 4 * u + 3)}")
        e(f"s_or_b64 vcc, vcc, {sr(S_P1, 2)}")
    for u in range(4, 6):
        e(f"v_cmp_ne_u64 {sr(S_P1, 2)}, {sr(S_TAG, 2)}, {vr(VGA + 4 * u + 2, 2)}")
        e(f"s_or_b64 vcc, vcc, {sr(S_P1, 2)}")
    e("s_cbranch_scc0 L_got3")
    e(f"s_cmp_lt_u32 {sr(S_CNT)}, {o['npoll']}")
    e("s_cbranch_scc1 L_poll3")
    e.label("L_got3")
    stamp("got3")
    for u in range(4):
        e(f"v_mov_b32 {vr(VGA + 4 * u + 3)}, {vr(VGA + 16 + 4 * (u & 1) + (u >> 1))}")
    VM, VL, VMX, VWT, VY = VMLG + 2, VMLG + 3, T0, T1, 224

    def d1_tile(it):
        for u in range(4):
            c = vr(VD1 + 4 * it, 4) if u else "0"
            e(f"{MF} {vr(VD1 + 4 * it, 4)}, {vr(VGA + 4 * u, 4)}, {vr(VUB + 16 * it + 4 * u, 4)}, {c}")

    def y_tile(it):
        e(f"v_mul_f32_dpp {vr(VY + it)}, {vr(VWT)}, {vr(VD1 + 4 * it)} quad_perm:[0,0,0,0] {FULL}")
        for r in range(1, 4):
            e(f"v_fmac_f32_dpp {vr(VY + it)}, {vr(VWT)}, {vr(VD1 + 4 * it + r)} quad_perm:[{r},{r},{r},{r}] {FULL}")

    d1_tile(0)
    e(f"v_max_f32_dpp {vr(VMX)}, {vr(VM)}, {vr(VM)} quad_perm:[1,0,3,2] {FULL}")
    e(f"v_max_f32_dpp {vr(VMX)}, {vr(VMX)}, {vr(VMX)} quad_perm:[2,3,0,1] {FULL}")
    allred_g("v_max_f32", VMX, T2)
    d1_tile(1)
    e(f"v_sub_f32 {vr(VWT)}, {vr(VM)}, {vr(VMX)}")
    e(f"v_exp_f32 {vr(VWT)}, {vr(VWT)}")
    e(f"v_mul_f32 {vr(VL)}, {vr(VL)}, {vr(VWT)}")
    y_tile(0)
    d1_tile(2)
    e(f"v_add_f32_dpp {vr(VL)}, {vr(VL)}, {vr(VL)} quad_perm:[1,0,3,2] {FULL}")
    e(f"v_add_f32_dpp {vr(VL)}, {vr(VL)}, {vr(VL)} quad_perm:[2,3,0,1] {FULL}")
    y_tile(1)
    d1_tile(3)
    allred_g("v_add_f32", VL, T2)
    e(f"ds_write2_b32 {vr(V_M2W)}, {vr(VMX)}, {vr(VL)} offset0:0 offset1:4")
    y_tile(2)
    e(f"v_permlane32_swap_b32 {vr(VY)}, {vr(VY + 2)}")
    e(f"v_add_f32 {vr(VY)}, {vr(VY)}, {vr(VY + 2)}")
    y_tile(3)
    e(f"v_permlane32_swap_b32 {vr(VY + 1)}, {vr(VY + 3)}")
    e(f"v_add_f32 {vr(VY + 1)}, {vr(VY + 1)}, {vr(VY + 3)}")
    e(f"v_permlane16_swap_b32 {vr(VY)}, {vr(VY + 1)}")
    e(f"v_add_f32 {vr(VY)}, {vr(VY)}, {vr(VY + 1)}")
    e(f"v_cvt_pk_bf16_f32 {vr(VY)}, {vr(VY)}, {vr(VY)}")
    e(f"ds_write_b16 {vr(V_CXW)}, {vr(VY)}")
    e.wait(lg="all")
    e("s_barrier   ; B6")
    stamp("B6")
    for k in range(2):
        for s in range(2):
            e(f"ds_read_b128 {vr(VCA + 8 * k + 4 * s, 4)}, {vr(V_CR2 if k else V_CR1)} offset:{64 * s}", f"ca{k}{s}")
    e(f"ds_read_b128 {vr(VM2, 4)}, {vr(V_M2R)}", "m2")
    e(f"ds_read_b128 {vr(VM2 + 4, 4)}, {vr(V_M2R)} offset:16", "m2")

    def do_tile(i):
        for k in range(2):
            for s in range(2):
                e.wait(lg=f"ca{k}{s}")
                c = vr(VDO + 4 * i, 4) if (k or s) else "0"
                e(f"{MF} {vr(VDO + 4 * i, 4)}, {vr(VCA + 8 * k + 4 * s, 4)}, {vr(VOT + 32 * s + 4 * (i + 4 * k), 4)}, {c}")

    def out_tile(i):
        for r in range(4):
            e(f"v_fmac_f32 {vr(VFF + i)}, {vr(VM2 + r)}, {vr(VDO + 4 * i + r)}")
        e(f"v_add_u32 {vr(VFF + i)}, 0x800, {vr(VFF + i)}")
        e(f"v_and_or_b32 {vr(VFF + i)}, {vr(VFF + i)}, {vr(VMASK)}, {vr(VTG + i)}")

    do_tile(0)
    e.wait(lg="m2")
    e(f"v_max3_f32 {vr(T0)}, {vr(VM2)}, {vr(VM2 + 1)}, {vr(VM2 + 2)}")
    e(f"v_max_f32 {vr(T0)}, {vr(T0)}, {vr(VM2 + 3)}")
    for r in range(4):
        e(f"v_sub_f32 {vr(VM2 + r)}, {vr(VM2 + r)}, {vr(T0)}")
    for r in range(4):
        e(f"v_exp_f32 {vr(VM2 + r)}, {vr(VM2 + r)}")
    do_tile(1)
    e(f"v_mul_f32 {vr(T0)}, {vr(VM2)}, {vr(VM2 + 4)}")
    for r in range(1, 4):
        e(f"v_fmac_f32 {vr(T0)}, {vr(VM2 + r)}, {vr(VM2 + 4 + r)}")
    e(f"v_rcp_f32 {vr(T0)}, {vr(T0)}")
    e(f"v_mul_f32 {vr(T0)}, {vr(T0)}, {vr(VGATE)}")
    for r in range(4):
        e(f"v_mul_f32 {vr(VM2 + r)}, {vr(VM2 + r)}, {vr(T0)}")
    do_tile(2)
    out_tile(0)
    out_tile(1)
    do_tile(3)
    out_tile(2)
    out_tile(3)
    e(f"buffer_store_dwordx4 {vr(VFF, 4)}, {vr(V_H5O)}, {srd(SWS)}, 0 offen sc1")
    stamp("pub5")
    e("s_barrier   ; B7")
    e("s_barrier   ; B8")
    stamps_flush(0, "qo")
    e("s_endpgm")

    e.label("L_attn")
    e.fresh()
    stamps_begin(list(range(24, 44, 2)) + list(range(48, 60, 2)))
    L3, N7, G, N, HB = 1, 2, 3, 4, 5
    V_MXW, V_PW, V_PR1, V_PR2, V_TR0, V_TR1, V_CG, V_SR, V_GO, V_QW0, V_QW1, V_QR, V_OO, V_MLW = range(6, 20)
    V_MXR = 254
    T0, T1, T2, T3 = 20, 21, 22, 23
    VC, VB, VT, VS = 24, 152, 216, 224
    VP, VO, VSD, VMLD = 152, 184, 24, 248
    VONE, VW4, VLJ = 252, 12, 253
    e(f"s_load_dwordx2 {sr(SCKV, 2)}, s[0:1], 8")
    e(f"s_load_dwordx2 {sr(SOUT, 2)}, s[0:1], 80")
    e(f"s_sub_u32 {sr(S_W)}, {sr(S_W)}, 4")
    set_srd(SCKV, 8 << 20)
    set_srd(SOUT, 1024)
    e(f"s_lshl3_add_u32 {sr(S_KC)}, {sr(S_J)}, {sr(S_X)}")
    e(f"v_lshrrev_b32 {vr(L3)}, 3, v0")
    e(f"v_and_b32 {vr(N7)}, 7, v0")
    e(f"v_lshrrev_b32 {vr(G)}, 4, v0")
    e(f"v_and_b32 {vr(N)}, 15, v0")
    e(f"v_lshrrev_b32 {vr(HB)}, 3, {vr(N)}")
    for r in range(4):
        e(f"v_mov_b32 {vr(VC + 4 + r)}, 0")
    e(f"s_lshl_b32 {sr(S_T)}, {sr(S_W)}, 10")
    e(f"s_add_u32 {sr(S_T)}, {sr(S_T)}, {PB}")
    e(f"v_lshl_add_u32 {vr(T1)}, v0, 4, {sr(S_T)}")
    e(f"ds_write_b128 {vr(T1)}, {vr(VC + 4, 4)}")
    e(f"v_lshlrev_b32 {vr(V_MXR)}, 4, {vr(N7)}")
    e(f"v_add_u32 {vr(V_MXR)}, {MX}, {vr(V_MXR)}")
    e(f"v_lshl_add_u32 {vr(V_MXW)}, {sr(S_W)}, 2, {vr(V_MXR)}")
    e(f"v_mov_b32 {vr(T2)}, -1")
    e(f"v_mov_b32 {vr(T3)}, -1")
    e(f"ds_write_b32 {vr(V_MXW)}, {vr(T2)}")
    e(f"s_mul_i32 {sr(S_T2)}, {sr(S_W)}, 320")
    e(f"s_add_u32 {sr(S_T2)}, {sr(S_T2)}, {QP}")
    e(f"v_min_u32 {vr(T1)}, 39, v0")
    e(f"v_lshl_add_u32 {vr(T1)}, {vr(T1)}, 3, {sr(S_T2)}")
    e(f"ds_write_b64 {vr(T1)}, {vr(T2, 2)}")
    e(f"v_lshl_add_u32 {vr(V_PW)}, {vr(G)}, 8, {sr(S_T)}")
    e(f"v_lshl_add_u32 {vr(V_PW)}, {vr(N7)}, 4, {vr(V_PW)}")
    e(f"v_lshl_add_u32 {vr(V_PW)}, {vr(HB)}, 3, {vr(V_PW)}")
    e(f"v_lshlrev_b32 {vr(V_PR1)}, 4, v0")
    e(f"v_xor_b32 {vr(V_PR2)}, 0x80, {vr(V_PR1)}")
    e(f"v_add_u32 {vr(V_PR1)}, {PB}, {vr(V_PR1)}")
    e(f"v_add_u32 {vr(V_PR2)}, {PB}, {vr(V_PR2)}")
    e(f"s_lshl2_add_u32 {sr(S_T)}, {sr(S_KC)}, {sr(S_W)}")
    e(f"s_lshl_b32 {sr(S_T)}, {sr(S_T)}, 15")
    e(f"v_lshl_add_u32 {vr(V_CG)}, v0, 4, {sr(S_T)}")
    e(f"s_mul_i32 {sr(S_T2)}, {sr(S_W)}, {32 * CROW}")
    e(f"v_mul_u32_u24 {vr(V_SR)}, {CROW}, {vr(N)}")
    e(f"v_lshl_add_u32 {vr(V_SR)}, {vr(G)}, 4, {vr(V_SR)}")
    e(f"v_add_u32 {vr(V_SR)}, {sr(S_T2)}, {vr(V_SR)}")
    assert CKV == 0
    e(f"s_lshl_b32 {sr(S_T)}, {sr(S_GAM)}, 15")
    e(f"s_lshl_b32 {sr(S_P0)}, {sr(S_W)}, 9")
    e(f"s_add_u32 {sr(S_T)}, {sr(S_T)}, {sr(S_P0)}")
    e(f"v_lshl_add_u32 {vr(V_GO)}, {vr(L3)}, 12, {sr(S_T)}")
    e(f"v_lshl_add_u32 {vr(V_GO)}, {vr(N7)}, 4, {vr(V_GO)}")
    e(f"s_lshl_b32 {sr(S_T)}, {sr(S_W)}, 12")
    e(f"s_add_u32 {sr(S_T)}, {sr(S_T)}, {QA}")
    e(f"v_lshl_add_u32 {vr(V_QW0)}, v0, 3, {sr(S_T)}")
    e(f"v_xor_b32 {vr(T1)}, 4, v0")
    e(f"s_add_u32 {sr(S_T)}, {sr(S_T)}, 512")
    e(f"v_lshl_add_u32 {vr(V_QW1)}, {vr(T1)}, 3, {sr(S_T)}")
    e(f"v_lshlrev_b32 {vr(T1)}, 1, {vr(HB)}")
    e(f"v_xor_b32 {vr(T1)}, {vr(T1)}, {vr(G)}")
    e(f"v_lshlrev_b32 {vr(T1)}, 4, {vr(T1)}")
    e(f"v_lshl_add_u32 {vr(T1)}, {vr(N)}, 6, {vr(T1)}")
    e(f"v_add_u32 {vr(V_QR)}, {QA}, {vr(T1)}")
    e(f"v_lshrrev_b32 {vr(T1)}, 2, v0")
    e(f"v_mul_u32_u24 {vr(T1)}, {CROW}, {vr(T1)}")
    e(f"v_and_b32 {vr(T2)}, 3, v0")
    e(f"v_lshl_add_u32 {vr(T1)}, {vr(T2)}, 3, {vr(T1)}")
    e(f"s_lshl_b32 {sr(S_T)}, {sr(S_W)}, 8")
    e(f"v_add_u32 {vr(V_TR0)}, {sr(S_T)}, {vr(T1)}")
    e(f"v_add_u32 {vr(V_TR1)}, {64 * CROW}, {vr(V_TR0)}")
    e(f"s_lshl_b32 {sr(S_T)}, {sr(S_GAM)}, 5")
    e(f"s_add_u32 {sr(S_T)}, {sr(S_T)}, {sr(S_W)}")
    e(f"s_lshl_b32 {sr(S_T)}, {sr(S_T)}, 6")
    e(f"s_add_u32 {sr(S_T)}, {sr(S_T)}, {sr(S_KC)}")
    e(f"s_mul_i32 {sr(S_T)}, {sr(S_T)}, 384")
    e(f"s_add_u32 {sr(S_T)}, {sr(S_T)}, {H3}")
    e(f"v_mul_u32_u24 {vr(V_OO)}, {256 * 384}, {vr(N7)}")
    e(f"v_add_u32 {vr(V_OO)}, {sr(S_T)}, {vr(V_OO)}")
    e(f"v_lshl_add_u32 {vr(V_OO)}, {vr(HB)}, 6, {vr(V_OO)}")
    e(f"v_lshl_add_u32 {vr(V_OO)}, {vr(G)}, 4, {vr(V_OO)}")
    e(f"s_lshl_b32 {sr(S_T)}, {sr(S_GAM)}, 6")
    e(f"s_add_u32 {sr(S_T)}, {sr(S_T)}, {sr(S_KC)}")
    e(f"s_lshl_b32 {sr(S_T)}, {sr(S_T)}, 7")
    e(f"s_add_u32 {sr(S_T)}, {sr(S_T)}, {ML}")
    e(f"s_cmp_eq_u32 {sr(S_W)}, 0")
    e(f"s_cselect_b32 {sr(S_T)}, {sr(S_T)}, {OOB}")
    e(f"v_lshl_add_u32 {vr(T1)}, v0, 4, {sr(S_T)}")
    e(f"v_mov_b32 {vr(T2)}, {OOB}")
    e("v_cmp_gt_u32 vcc, 8, v0")
    e(f"v_cndmask_b32 {vr(V_MLW)}, {vr(T2)}, {vr(T1)}, vcc")
    e(f"v_mov_b32 {vr(VONE)}, 0x3f803f80")
    e(f"s_mov_b32 m0, {sr(S_T2)}")
    e(f"s_mov_b32 {sr(S_T)}, 0")
    e("s_waitcnt lgkmcnt(0)")
    e.lg = []
    stamp("start")
    e(f"s_load_dword {sr(S_E)}, {sr(SWS, 2)}, {EPOCH}")
    e("s_barrier   ; B0")
    stamp("B0")
    for rr in range(32):
        e(f"buffer_load_dwordx4 {vr(V_CG)}, {srd(SCKV)}, {sr(S_T)} offen offset:{1024 * (rr & 3)}{NT} lds", f"c{rr // 16}")
        if rr < 31:
            if rr & 3 == 3:
                e(f"s_add_u32 m0, m0, {4096 + 32}")
                e(f"s_add_u32 {sr(S_T)}, {sr(S_T)}, 0x1000")
            else:
                e("s_add_u32 m0, m0, 32")
    stamp("dma")
    e("s_waitcnt lgkmcnt(0)")
    e.lg = []
    make_tags()
    e(f"v_mov_b32 {vr(VMLD)}, {sr(S_TAG)}")
    e(f"v_mov_b32 {vr(VMLD + 1)}, {sr(S_TAG + 1)}")
    for t in range(2):
        e.wait(vm=f"c{t}")
        for ks in range(16):
            e(f"ds_read_b128 {vr(VC + 8 * ks + 4 * t, 4)}, {vr(V_SR)} offset:{t * 16 * CROW + 64 * ks}")
    stamp("ckv")
    e.label("L_poll2")
    for kk in range(4):
        for hb in range(2):
            e(f"buffer_load_dwordx4 {vr(VB + 8 * kk + 4 * hb, 4)}, {vr(V_GO)}, {srd(SWS)}, 0 offen offset:{2048 * hb + 128 * kk} sc1")
    e(f"s_add_u32 {sr(S_CNT)}, {sr(S_CNT)}, 1")
    e.wait(vm="all")
    e(f"v_cmp_ne_u64 vcc, {sr(S_TAG, 2)}, {vr(VB, 2)}")
    for k in range(1, 8):
        e(f"v_cmp_ne_u64 {sr(S_P1, 2)}, {sr(S_TAG, 2)}, {vr(VB + 4 * k, 2)}")
        e(f"s_or_b64 vcc, vcc, {sr(S_P1, 2)}")
    e("s_cbranch_scc0 L_got2")
    e(f"s_cmp_lt_u32 {sr(S_CNT)}, {o['npoll']}")
    e("s_cbranch_scc1 L_poll2")
    e.label("L_got2")
    stamp("got2")
    for kk in range(4):
        for hb in range(2):
            e(f"ds_write_b64 {vr(V_QW1 if hb else V_QW0)}, {vr(VB + 8 * kk + 4 * hb + 2, 2)} offset:{1024 * kk}")
    e.wait(lg="all")
    e("s_barrier   ; B2")
    stamp("B2")
    for ks in range(16):
        e(f"ds_read_b128 {vr(VB + 4 * ks, 4)}, {vr(V_QR)} offset:{1024 * ks}", f"b{ks}")

    def tr_read(sp, j, q, half):
        slot = 16 * sp + 4 * j + q
        base = V_TR1 if j >= 2 else V_TR0
        off = (32 * (j & 1) + 16 * half) * CROW + 32 * (4 * sp + q)
        e(f"ds_read_b64_tr_b16 {vr(VC + 4 * slot + 2 * half, 2)}, {vr(base)} offset:{off}", f"tr{sp}{j}")

    trs = [(j, q, half) for j in range(4) for q in range(4) for half in range(2)]
    for ks in range(16):
        if ks < 8:
            e.wait(lg=f"b{ks}")
        elif ks == 8:
            e.wait(lg="all")
        for t in range(2):
            c = vr(VT + 4 * t, 4) if ks else "0"
            e(f"{MF} {vr(VT + 4 * t, 4)}, {vr(VC + 8 * ks + 4 * t, 4)}, {vr(VB + 4 * ks, 4)}, {c}")
            if ks >= 8:
                for z in range(2):
                    tr_read(0, *trs[4 * (ks - 8) + 2 * t + z])
    for r in range(4):
        e(f"v_add_f32_dpp {vr(VS + r)}, {vr(VT + r)}, {vr(VT + r)} row_ror:8 row_mask:0xf bank_mask:0x3")
    for r in range(4):
        e(f"v_add_f32_dpp {vr(VS + r)}, {vr(VT + 4 + r)}, {vr(VT + 4 + r)} row_ror:8 row_mask:0xf bank_mask:0xc")
    e(f"v_max3_f32 {vr(T0)}, {vr(VS)}, {vr(VS + 1)}, {vr(VS + 2)}")
    e(f"v_max_f32 {vr(T0)}, {vr(T0)}, {vr(VS + 3)}")
    e(f"v_max_f32_dpp {vr(T0)}, {vr(T0)}, {vr(T0)} row_ror:8 {FULL}")
    allred_g("v_max_f32", T0, T1)
    for r in range(4):
        e(f"v_sub_f32 {vr(VS + r)}, {vr(VS + r)}, {vr(T0)}")
    for r in range(4):
        e(f"v_exp_f32 {vr(VS + r)}, {vr(VS + r)}")
    e(f"v_cvt_pk_bf16_f32 {vr(T2)}, {vr(VS)}, {vr(VS + 1)}")
    e(f"v_cvt_pk_bf16_f32 {vr(T3)}, {vr(VS + 2)}, {vr(VS + 3)}")
    e(f"ds_write_b64 {vr(V_PW)}, {vr(T2, 2)}")
    e(f"ds_write_b32 {vr(V_MXW)}, {vr(T0)}")
    stamp("S")
    e(f"s_mov_b32 {sr(S_T)}, 0")
    e.label("L_sync4")
    e(f"ds_read_b128 {vr(VW4, 4)}, {vr(V_MXR)}", "mx")
    for j in range(4):
        e(f"ds_read_b128 {vr(VP + 8 * j, 4)}, {vr(V_PR1)} offset:{1024 * j}", f"p{j}")
        e(f"ds_read_b128 {vr(VP + 8 * j + 4, 4)}, {vr(V_PR2)} offset:{1024 * j}", f"p{j}")
    e(f"s_add_u32 {sr(S_T)}, {sr(S_T)}, 1")
    e.wait(lg="mx")
    e(f"v_max3_u32 {vr(T0)}, {vr(VW4)}, {vr(VW4 + 1)}, {vr(VW4 + 2)}")
    e(f"v_max_u32 {vr(T0)}, {vr(T0)}, {vr(VW4 + 3)}")
    e(f"v_cmp_eq_u32 vcc, -1, {vr(T0)}")
    e("s_cbranch_vccz L_got4")
    e(f"s_cmp_lt_u32 {sr(S_T)}, {o['npoll']}")
    e("s_cbranch_scc1 L_sync4")
    e.label("L_got4")
    stamp("P")

    def acc(sp, j, t=0):
        return VO + 32 * sp + 8 * j + 4 * t

    def pv(sp, j, q):
        a = acc(sp, j, q & 1)
        c = vr(a, 4) if q >= 2 else "0"
        e(f"{MF} {vr(a, 4)}, {vr(VC + 4 * (16 * sp + 4 * j + q), 4)}, {vr(VP + 8 * j + 4 * (q >> 1), 4)}, {c}")

    def fold(sp, j, k):
        d = vr(acc(sp, 0) + 2 * k, 2)
        w = vr(VW4 + (j & ~1), 2)
        h = j & 1
        if j == 0:
            e(f"v_pk_mul_f32 {d}, {d}, {w} op_sel:[0,{h}] op_sel_hi:[1,{h}]")
        else:
            e(f"v_pk_fma_f32 {d}, {vr(acc(sp, j) + 2 * k, 2)}, {w}, {d} op_sel:[0,{h},0] op_sel_hi:[1,{h},1]")

    def cvt(sp, k):
        d = VSD + 4 * sp + k if k < 3 else VSD + 8 + sp
        e(f"v_cvt_pk_bf16_f32 {vr(d)}, {vr(acc(sp, 0) + 2 * k)}, {vr(acc(sp, 0) + 2 * k + 1)}")

    def o_store(k):
        e(f"buffer_store_dwordx4 {vr(VSD + 4 * k, 4)}, {vr(V_OO)}, {srd(SWS)}, 0 offen offset:{128 * k} sc1")

    wcalc = [f"v_max3_f32 {vr(VMLD + 2)}, {vr(VW4)}, {vr(VW4 + 1)}, {vr(VW4 + 2)}",
             f"v_max_f32 {vr(VMLD + 2)}, {vr(VMLD + 2)}, {vr(VW4 + 3)}"]
    wcalc += [f"v_sub_f32 {vr(VW4 + r)}, {vr(VW4 + r)}, {vr(VMLD + 2)}" for r in range(4)]
    wcalc += [f"v_exp_f32 {vr(VW4 + r)}, {vr(VW4 + r)}" for r in range(4)]
    for j in range(4):
        e.wait(lg=f"p{j}")
        for q in range(4):
            pv(0, j, q)
            for half in range(2):
                tr_read(1, j, q, half)
            if wcalc:
                for z in range(2 if j == 0 else 1):
                    e(wcalc.pop(0))
            elif j >= 2:
                fold(0, j - 2, q)
    for j in range(4):
        e.wait(lg=f"tr1{j}")
        for q in range(4):
            pv(1, j, q)
            c = vr(VLJ) if q else "0"
            e(f"v_dot2_f32_bf16 {vr(VLJ)}, {vr(VP + 8 * j + q)}, {vr(VONE)}, {c}")
            if j < 2:
                fold(0, j + 2, q)
            else:
                fold(1, j - 2, q)
            if j == 0:
                e(f"v_mov_b32 {vr(VSD + (3, 7, 10, 11)[q])}, {sr(S_TAG + (q == 3))}")
            if j == 2:
                cvt(0, q)
        if j == 0:
            e(f"v_mul_f32 {vr(VMLD + 3)}, {vr(VLJ)}, {vr(VW4)}")
        else:
            e(f"v_fmac_f32 {vr(VMLD + 3)}, {vr(VLJ)}, {vr(VW4 + j)}")
        if j == 2:
            o_store(0)
    for k in range(4):
        fold(1, 2, k)
    allred_g("v_add_f32", VMLD + 3, T0)
    for k in range(4):
        fold(1, 3, k)
    for k in range(4):
        cvt(1, k)
    o_store(1)
    o_store(2)
    e(f"buffer_store_dwordx4 {vr(VMLD, 4)}, {vr(V_MLW)}, {srd(SWS)}, 0 offen sc1")
    stamp("pub3")
    e("s_barrier   ; B5")
    e("s_cmp_lt_u32 s2, 32")
    e("s_cbranch_scc1 L_reduce")
    stamps_flush(4, "attn")
    e("s_endpgm")

    e.label("L_reduce")
    V_RO, V_RW, V_RR, V_FO = 6, 7, 8, 9
    VR = 24
    e(f"s_lshl2_add_u32 {sr(S_T)}, s2, {sr(S_W)}")
    e(f"s_lshl_b32 {sr(S_T)}, {sr(S_T)}, 12")
    e(f"s_add_u32 {sr(S_T)}, {sr(S_T)}, {H5}")
    e(f"v_lshl_add_u32 {vr(V_RO)}, v0, 4, {sr(S_T)}")
    e(f"s_lshl2_add_u32 {sr(S_T)}, {sr(S_W)}, {RD}")
    e(f"v_and_b32 {vr(T0)}, 3, v0")
    e(f"v_lshl_add_u32 {vr(V_RW)}, {vr(T0)}, 6, {sr(S_T)}")
    e(f"v_lshl_add_u32 {vr(V_RW)}, {vr(G)}, 4, {vr(V_RW)}")
    e(f"v_lshlrev_b32 {vr(V_RR)}, 4, {vr(N)}")
    e(f"v_add_u32 {vr(V_RR)}, {RD}, {vr(V_RR)}")
    e(f"s_lshl_b32 {sr(S_T)}, s2, 5")
    e(f"s_cmp_eq_u32 {sr(S_W)}, 0")
    e(f"s_cselect_b32 {sr(S_T)}, {sr(S_T)}, {OOB}")
    e(f"v_lshl_add_u32 {vr(T0)}, v0, 1, {sr(S_T)}")
    e(f"v_mov_b32 {vr(T1)}, {OOB}")
    e("v_cmp_gt_u32 vcc, 16, v0")
    e(f"v_cndmask_b32 {vr(V_FO)}, {vr(T1)}, {vr(T0)}, vcc")
    V_EO, V_EV = 10, 11
    e(f"s_lshl2_add_u32 {sr(S_T)}, s2, {sr(S_W)}")
    e(f"s_cmp_eq_u32 {sr(S_T)}, 1")
    e(f"s_cselect_b32 {sr(S_T)}, 0, {OOB}")
    e(f"s_add_u32 {sr(S_T)}, {sr(S_T)}, {EPOCH}")
    e(f"v_mov_b32 {vr(T0)}, {sr(S_T)}")
    e("v_cmp_eq_u32 vcc, 0, v0")
    e(f"v_cndmask_b32 {vr(V_EO)}, {vr(T1)}, {vr(T0)}, vcc")
    e(f"s_add_u32 {sr(S_T)}, {sr(S_E)}, 1")
    e(f"v_mov_b32 {vr(V_EV)}, {sr(S_T)}")
    e(f"s_lshl_b32 {sr(S_CNT)}, {sr(S_CNT)}, 16")
    e(f"s_add_u32 {sr(S_T2)}, {sr(S_CNT)}, {o['npoll']}")
    e("s_barrier   ; B6")
    e("s_barrier   ; B7")
    stamp("B7")
    e.label("L_poll5")
    for jj in range(4):
        e(f"buffer_load_dwordx4 {vr(VR + 4 * jj, 4)}, {vr(V_RO)}, {srd(SWS)}, 0 offen offset:{1024 * jj} sc1")
    e(f"s_add_u32 {sr(S_CNT)}, {sr(S_CNT)}, 1")
    e.wait(vm="all")
    for k in range(16):
        e(f"v_xor_b32 {vr(VR + k)}, {sr(S_TG5 + (k & 3))}, {vr(VR + k)}")
    e(f"v_or3_b32 {vr(T0)}, {vr(VR)}, {vr(VR + 1)}, {vr(VR + 2)}")
    for k in range(3, 15, 2):
        e(f"v_or3_b32 {vr(T0)}, {vr(T0)}, {vr(VR + k)}, {vr(VR + k + 1)}")
    e(f"v_or_b32 {vr(T0)}, {vr(T0)}, {vr(VR + 15)}")
    e(f"v_and_b32 {vr(T0)}, 0xfff, {vr(T0)}")
    e(f"v_cmp_ne_u32 vcc, 0, {vr(T0)}")
    e("s_cmp_lg_u64 vcc, 0")
    e("s_cbranch_scc0 L_got5")
    e(f"s_cmp_lt_u32 {sr(S_CNT)}, {sr(S_T2)}")
    e("s_cbranch_scc1 L_poll5")
    e.label("L_got5")
    stamp("got5")
    for r in range(0, 4, 2):
        e(f"v_pk_add_f32 {vr(VR + r, 2)}, {vr(VR + r, 2)}, {vr(VR + 4 + r, 2)}")
        e(f"v_pk_add_f32 {vr(VR + 8 + r, 2)}, {vr(VR + 8 + r, 2)}, {vr(VR + 12 + r, 2)}")
    for r in range(0, 4, 2):
        e(f"v_pk_add_f32 {vr(VR + r, 2)}, {vr(VR + r, 2)}, {vr(VR + 8 + r, 2)}")
    e(f"v_permlane32_swap_b32 {vr(VR)}, {vr(VR + 2)}")
    e(f"v_permlane32_swap_b32 {vr(VR + 1)}, {vr(VR + 3)}")
    e(f"v_pk_add_f32 {vr(VR, 2)}, {vr(VR, 2)}, {vr(VR + 2, 2)}")
    e(f"v_permlane16_swap_b32 {vr(VR)}, {vr(VR + 1)}")
    e(f"v_add_f32 {vr(VR)}, {vr(VR)}, {vr(VR + 1)}")
    e(f"v_add_f32_dpp {vr(VR)}, {vr(VR)}, {vr(VR)} row_ror:4 {FULL}")
    e(f"v_add_f32_dpp {vr(VR)}, {vr(VR)}, {vr(VR)} row_ror:8 {FULL}")
    e(f"ds_write_b32 {vr(V_RW)}, {vr(VR)}")
    e.wait(lg="all")
    e("s_barrier   ; B8")
    e(f"ds_read_b128 {vr(VR, 4)}, {vr(V_RR)}")
    e(f"buffer_store_dword {vr(V_EV)}, {vr(V_EO)}, {srd(SWS)}, 0 offen")
    e.wait(lg="all")
    e(f"v_pk_add_f32 {vr(VR, 2)}, {vr(VR, 2)}, {vr(VR + 2, 2)}")
    e(f"v_add_f32 {vr(VR)}, {vr(VR)}, {vr(VR + 1)}")
    e(f"v_cvt_pk_bf16_f32 {vr(VR)}, {vr(VR)}, {vr(VR)}")
    e(f"buffer_store_short {vr(VR)}, {vr(V_FO)}, {srd(SOUT)}, 0 offen")
    stamp("out")
    stamps_flush(4, "red")
    e.label("L_end")
    e("s_endpgm")

    ref = open(os.path.join(os.path.dirname(os.path.abspath(__file__)), "..", "cdna_kernels", NAME + ".s.ref")).read()
    head, rest = ref.split(f"{NAME}_kernel:\n", 1)
    tail = rest[rest.index(".section .rodata"):]
    head = head.replace("; @launch grid=(2,1,1) block=(256,1,1) lds=0",
                        f"; @launch grid=(256,1,1) block=(512,1,1) lds={LDS_BYTES}")
    return head + f"{NAME}_kernel:\n" + e.text() + tail, e


STAMP_GROUPS = [("qo", slice(0, 4), slice(0, 256)), ("attn", slice(4, 8), slice(32, 256)), ("red", slice(4, 8), slice(0, 32))]


def check_intermediates(c, m, from_bf16, relerr):
    import numpy as np
    sc = LOG2E / math.sqrt(128.0)
    h2 = c.read_ws(H2, 0x20000).reshape(32, 2, 16, 8, 4)
    print("H2 tags distinct:", len(np.unique(h2[..., 0])), len(np.unique(h2[..., 1])))
    qa = from_bf16(np.ascontiguousarray(h2[..., 2:]).view(np.uint16)).reshape(32, 2, 512)
    print("H2 rel", relerr(qa, m["qa_half"] * sc))
    ml = c.read_ws(ML, 0x8000).reshape(4, 64, 8, 4)
    print("ML tags distinct:", len(np.unique(ml[..., 0])), len(np.unique(ml[..., 1])))
    mm = ml[..., 2].copy().view(np.float32).transpose(0, 2, 1).reshape(32, 64)
    ll = ml[..., 3].copy().view(np.float32).transpose(0, 2, 1).reshape(32, 64)
    s2 = (m["s"] * LOG2E).reshape(32, 64, 128)
    print("m rel", relerr(mm, s2.max(2)))
    p = np.exp2(s2 - mm[:, :, None])
    print("l rel", relerr(ll, p.sum(2)))
    op = np.einsum("hjk,jkc->hjc", p, m["ckv"].reshape(64, 128, 512))
    r3 = c.read_ws(H3, 0x300000).reshape(32, 4, 64, 3, 8, 4).copy()
    print("H3 tags distinct:", len(np.unique(r3[..., :2, :, 3])), len(np.unique(r3[..., 2, :, 2])), len(np.unique(r3[..., 2, :, 3])))
    r3[..., 0, :, 3] = r3[..., 2, :, 0]
    r3[..., 1, :, 3] = r3[..., 2, :, 1]
    h3 = from_bf16(np.ascontiguousarray(r3[..., :2, :, :]).view(np.uint16)).reshape(32, 4, 64, 128)
    idx = np.zeros(128, int)
    for sp in range(2):
        for hb in range(2):
            for g in range(4):
                for k in range(8):
                    idx[64 * sp + 32 * hb + 8 * g + k] = 64 * sp + 32 * hb + 16 * (k // 4) + 4 * g + (k & 3)
    exp3 = op.reshape(32, 64, 4, 128).transpose(0, 2, 1, 3)[..., idx]
    print("H3 rel", relerr(h3, exp3))
    h5 = c.read_ws(H5, 0x80000).reshape(32, 256, 16)
    print("H5 tags distinct:", [len(np.unique(h5[..., i::4] & 0xfff)) for i in range(4)])
    tot = (h5 & 0xfffff000).view(np.float32).astype(np.float64).sum(1).reshape(512)
    print("H5 sum rel", relerr(tot, m["out"]))


if __name__ == "__main__":
    out = sys.argv[1]
    opt = {}
    for kv in sys.argv[2:]:
        k, v = kv.split("=")
        opt[k] = int(v) if v.lstrip("-").isdigit() else v
    txt, e = build(opt)
    open(out, "w").write(txt)
    print(f"{out}: {e.count} instructions, {e.nops} pad states, lds {LDS_BYTES}")
```

```python
import math
import os
import struct
import sys

sys.path.insert(0, os.path.dirname(os.path.abspath(__file__)))
from asmlib import Asm, vr, sr

NAME = "gated_mix__compressed_kv_cla__dense_activation_silu__decode"

DEFAULTS = dict(
    stamps=0,
    nt=1,
    tail="B2",
    b0="wuk",
    npoll=20000,
)

H2 = 0x0
ML = 0x20000
H5 = 0x28000
EPOCH = 0xA8000
H3 = 0xB0000
DBG = 0x3B0000
WS_BYTES = 0x3D0000
OOB = 0x40000000

CROW = 1056
CKV = 0
QA = 128 * CROW
QP = QA + 128 * 160
PB = QP + 8 * 160
ZR = PB + 128
MX = PB + 4096
FH = MX + 128
CX = FH + 128
ML2 = CX + 4 * 160
RD = ML2 + 32
DUMMY = RD + 256
LDS_BYTES = DUMMY + 64

LOG2E = math.log2(math.e)
DBG_ORDER = [("at", "start"), ("qo", "iss"), ("qo", "q"), ("qo", "pub2"), ("at", "dma"), ("at", "ckv"), ("at", "got2"), ("at", "P"),
             ("qo", "tail"), ("at", "pub3"), ("qo", "B5"), ("qo", "got3"), ("qo", "pub5"), ("at", "got5"), ("at", "out")]


def f32(x):
    return "0x%08x" % struct.unpack("<I", struct.pack("<f", x))[0]


S_W = 3
SX, SWQ, SWUK, SWS, SCKV, SWUV, SWO, SW1, SW2, SG, SOUT = 4, 8, 12, 16, 20, 24, 28, 32, 36, 40, 44
S_K8 = 48
S_128K, S_192K, S_4K, S_36K = 64, 65, 66, 67
S_X, S_J, S_GAM, S_H, S_DH, S_CQ, S_KC, S_T = 68, 69, 70, 71, 72, 73, 74, 75
S_TAG = 76
S_E = 78
S_T2 = 79
S_TG5 = 80
S_CNT = 84
S_HD = 85
S_P0, S_P1 = 86, 88


def srd(b):
    return sr(b, 4)


def build(opt):
    o = dict(DEFAULTS)
    o.update(opt)
    e = Asm()
    NT = " nt" if o["nt"] else ""
    MF = "v_mfma_f32_16x16x32_bf16"

    stamp_regs = []
    stamp_used = []
    stamp_names = []

    def stamps_begin(regs):
        stamp_regs[:] = regs
        stamp_used[:] = []
        stamp_names[:] = []
        if o["stamps"]:
            e.comment("stampbegin")

    def stamp(name):
        if not o["stamps"]:
            return
        r = stamp_regs[len(stamp_used)]
        stamp_used.append(r)
        stamp_names.append(name)
        e(f"s_memrealtime {sr(r, 2)}")

    def stamps_flush(wave_add, setname):
        if not o["stamps"]:
            return
        if o["stamps"] == 2:
            grp = "qo" if setname == "qo" else "at"
            e("s_load_dwordx2 s[4:5], s[0:1], 88")
            set_srd(4, 256)
            e(f"v_mov_b32 v2, {OOB}")
            e("s_waitcnt lgkmcnt(0)")
            e(f"s_not_b32 {sr(S_T)}, {sr(stamp_used[0])}")
            e(f"v_writelane_b32 v1, {sr(S_T)}, 0")
            e("v_writelane_b32 v2, 0, 0")
            for r, nm in zip(stamp_used, stamp_names):
                if (grp, nm) in DBG_ORDER:
                    k = 1 + DBG_ORDER.index((grp, nm))
                    e(f"v_writelane_b32 v1, {sr(r)}, {k}")
                    e(f"v_writelane_b32 v2, {4 * k}, {k}")
            e("buffer_atomic_umax v1, v2, s[4:7], 0 offen sc1")
            return
        e("s_waitcnt lgkmcnt(0)")
        e("v_mov_b32 v1, 0")
        for k, r in enumerate(stamp_used):
            e(f"v_writelane_b32 v1, {sr(r)}, {k}")
        e(f"v_writelane_b32 v1, {sr(S_CNT)}, 15")
        e(f"s_lshl_b32 {sr(S_T)}, s2, 3")
        e(f"s_add_u32 {sr(S_T)}, {sr(S_T)}, {sr(S_W)}")
        e(f"s_add_u32 {sr(S_T)}, {sr(S_T)}, {wave_add}")
        e(f"s_lshl_b32 {sr(S_T)}, {sr(S_T)}, 6")
        e(f"s_add_u32 {sr(S_T)}, {sr(S_T)}, {DBG}")
        e(f"v_lshl_add_u32 v2, v0, 2, {sr(S_T)}")
        e(f"v_mov_b32 v3, {OOB}")
        e("v_cmp_gt_u32 vcc, 16, v0")
        e("v_cndmask_b32 v2, v3, v2, vcc")
        e(f"buffer_store_dword v1, v2, {srd(SWS)}, 0 offen")

    def set_srd(b, nbytes):
        e(f"s_mov_b32 {sr(b + 2)}, {nbytes}")
        e(f"s_mov_b32 {sr(b + 3)}, 0x00020000")

    def make_tags():
        e(f"s_not_b32 {sr(S_TAG)}, {sr(S_E)}")
        e(f"s_mul_i32 {sr(S_TAG + 1)}, {sr(S_E)}, 0x9E3779B1")
        e(f"s_add_u32 {sr(S_TAG + 1)}, {sr(S_TAG + 1)}, 0x7F4A7C15")
        e(f"s_and_b32 {sr(S_TG5)}, {sr(S_TAG)}, 0xfff")
        e(f"s_lshr_b32 {sr(S_TG5 + 1)}, {sr(S_TAG + 1)}, 20")
        e(f"s_bfe_u32 {sr(S_TG5 + 2)}, {sr(S_TAG + 1)}, 0xc0008")
        e(f"s_bfe_u32 {sr(S_TG5 + 3)}, {sr(S_TAG)}, 0xc000c")

    def allred_g(op, v, t):
        e(f"v_mov_b32 {vr(t)}, {vr(v)}")
        e(f"v_permlane16_swap_b32 {vr(v)}, {vr(t)}")
        e(f"{op} {vr(v)}, {vr(v)}, {vr(t)}")
        e(f"v_mov_b32 {vr(t)}, {vr(v)}")
        e(f"v_permlane32_swap_b32 {vr(v)}, {vr(t)}")
        e(f"{op} {vr(v)}, {vr(v)}, {vr(t)}")

    def sigmoid(dst, z, t):
        e(f"v_mul_f32 {vr(t)}, {f32(-LOG2E)}, {vr(z)}")
        e(f"v_exp_f32 {vr(t)}, {vr(t)}")
        e(f"v_add_f32 {vr(t)}, 1.0, {vr(t)}")
        e(f"v_rcp_f32 {vr(dst)}, {vr(t)}")

    FULL = "row_mask:0xf bank_mask:0xf"

    e("s_cmp_ge_u32 s2, 0x100")
    e("s_cbranch_scc1 L_end")
    e("v_lshrrev_b32 v1, 6, v0")
    e("v_and_b32 v0, 63, v0")
    e(f"v_readfirstlane_b32 {sr(S_W)}, v1")
    e(f"s_load_dwordx2 {sr(SWS, 2)}, s[0:1], 96")
    e(f"s_and_b32 {sr(S_X)}, s2, 7")
    e(f"s_bfe_u32 {sr(S_J)}, s2, 0x30003")
    e(f"s_lshr_b32 {sr(S_GAM)}, s2, 6")
    e(f"s_lshl3_add_u32 {sr(S_H)}, {sr(S_GAM)}, {sr(S_X)}")
    e(f"s_and_b32 {sr(S_DH)}, {sr(S_J)}, 1")
    e(f"s_lshr_b32 {sr(S_CQ)}, {sr(S_J)}, 1")
    set_srd(SWS, WS_BYTES)
    e(f"s_mov_b32 {sr(S_CNT)}, 0")
    e(f"s_cmp_ge_u32 {sr(S_W)}, 4")
    e("s_cbranch_scc1 L_attn")

    stamps_begin([20, 22, 44, 46, 90, 92, 94, 96, 98, 100, 48, 50, 54, 58, 60])
    L3, N7, G, N = 1, 2, 3, 4
    A0, A1, A2, A3, A4, A5, T0, T1, T2, T3 = 5, 6, 7, 8, 9, 10, 11, 12, 13, 14
    V_QPW, V_QR1, V_QR2, V_H2O, V_FHW = 15, 16, 17, 18, 19
    VX, SEL, VAF, VWQ, VWUK = 20, 28, 36, 100, 164
    VGX, VGW, VW1, VFX, VW2 = 180, 184, 188, 196, 200
    VQD, VQB, VD2, VST = 208, 212, 228, 232
    VGATE, V_WUVO, V_WOO = 244, 245, 246
    VFF = 240
    V_W2O = 197

    e(f"s_load_dwordx2 {sr(SX, 2)}, s[0:1], 0")
    e(f"s_load_dwordx2 {sr(SWQ, 2)}, s[0:1], 16")
    e(f"s_load_dwordx2 {sr(SWUK, 2)}, s[0:1], 24")
    e(f"s_load_dwordx2 {sr(SW1, 2)}, s[0:1], 56")
    e(f"s_load_dwordx2 {sr(SW2, 2)}, s[0:1], 64")
    e(f"s_load_dwordx2 {sr(SG, 2)}, s[0:1], 72")
    set_srd(SX, 1024)
    set_srd(SWQ, 4 << 20)
    set_srd(SWUK, 4 << 20)
    for i in range(16):
        e(f"s_mov_b32 {sr(S_K8 + i)}, {i * 8192}")
    e(f"v_lshrrev_b32 {vr(L3)}, 3, v0")
    e(f"v_and_b32 {vr(N7)}, 7, v0")
    e(f"v_lshrrev_b32 {vr(G)}, 4, v0")
    e(f"v_and_b32 {vr(N)}, 15, v0")
    e(f"s_lshl_b32 {sr(S_HD)}, {sr(S_H)}, 8")
    e(f"s_lshl_b32 {sr(S_T)}, {sr(S_DH)}, 7")
    e(f"s_add_u32 {sr(S_HD)}, {sr(S_HD)}, {sr(S_T)}")
    e(f"s_lshl_b32 {sr(S_T)}, {sr(S_W)}, 8")
    e(f"v_lshl_add_u32 {vr(A0)}, {vr(L3)}, 5, {sr(S_T)}")
    e(f"v_lshl_add_u32 {vr(A4)}, v0, 2, {sr(S_T)}")
    e(f"s_lshl_b32 {sr(S_T)}, {sr(S_W)}, 20")
    e(f"s_add_u32 {sr(S_T)}, {sr(S_T)}, {sr(S_HD)}")
    e(f"v_lshl_add_u32 {vr(A1)}, {vr(L3)}, 17, {sr(S_T)}")
    e(f"v_lshl_add_u32 {vr(A1)}, {vr(N7)}, 4, {vr(A1)}")
    e(f"s_lshl2_add_u32 {sr(S_T)}, {sr(S_CQ)}, {sr(S_W)}")
    e(f"s_lshl_b32 {sr(S_T)}, {sr(S_T)}, 18")
    e(f"s_add_u32 {sr(S_T2)}, {sr(S_T)}, {sr(S_HD)}")
    e(f"v_lshl_add_u32 {vr(A2)}, {vr(N)}, 13, {sr(S_T2)}")
    e(f"v_lshl_add_u32 {vr(A2)}, {vr(G)}, 4, {vr(A2)}")
    e(f"v_lshl_add_u32 {vr(V_WUVO)}, {vr(L3)}, 13, {sr(S_T2)}")
    e(f"v_lshl_add_u32 {vr(V_WUVO)}, {vr(N7)}, 4, {vr(V_WUVO)}")
    e(f"s_mov_b32 {sr(S_128K)}, 0x20000")
    e("s_waitcnt lgkmcnt(0)")
    stamp("start")
    if o["b0"] == "pre":
        e("s_barrier   ; B0")
    e(f"buffer_load_dwordx4 {vr(VX, 4)}, {vr(A0)}, {srd(SX)}, 0 offen", "x")
    e(f"buffer_load_dwordx4 {vr(VX + 4, 4)}, {vr(A0)}, {srd(SX)}, 0 offen offset:16", "x")
    for i in range(16):
        e(f"buffer_load_dwordx4 {vr(VWQ + 4 * i, 4)}, {vr(A1)}, {srd(SWQ)}, {sr(S_K8 + i)} offen{NT}", f"wq{i}")
    if o["b0"] == "wq":
        e("s_barrier   ; B0")
    for t in range(2):
        for s in range(2):
            so = sr(S_128K) if t else "0"
            e(f"buffer_load_dwordx4 {vr(VWUK + 8 * t + 4 * s, 4)}, {vr(A2)}, {srd(SWUK)}, {so} offen offset:{64 * s}{NT}", "wuk")
    if o["b0"] == "wuk":
        e("s_barrier   ; B0")
    stamp("iss")
    e(f"s_load_dword {sr(S_E)}, {sr(SWS, 2)}, {EPOCH}")
    e(f"s_load_dwordx2 {sr(SWUV, 2)}, s[0:1], 32")
    e(f"s_load_dwordx2 {sr(SWO, 2)}, s[0:1], 40")
    set_srd(SW1, 512 * 2752)
    set_srd(SW2, 1376 * 1024)
    set_srd(SG, 1024)
    set_srd(SWUV, 4 << 20)
    set_srd(SWO, 4 << 20)
    e(f"s_mov_b32 {sr(S_192K)}, 0x30000")
    e(f"s_mov_b32 {sr(S_4K)}, 0x1000")
    e(f"s_mov_b32 {sr(S_36K)}, 0x9000")
    e(f"s_lshr_b32 {sr(S_T)}, s2, 3")
    e(f"s_mul_i32 {sr(S_T2)}, {sr(S_X)}, 22")
    e(f"s_add_u32 {sr(S_T2)}, {sr(S_T2)}, {sr(S_T)}")
    e(f"s_cmp_lt_u32 {sr(S_T)}, 22")
    e(f"s_cselect_b32 {sr(S_T2)}, {sr(S_T2)}, 0x20000")
    e(f"s_cmp_lt_u32 {sr(S_T2)}, 172")
    e(f"s_cselect_b32 {sr(S_T2)}, {sr(S_T2)}, 0x20000")
    e(f"s_mul_i32 {sr(S_T)}, {sr(S_W)}, {128 * 2752}")
    e(f"s_lshl4_add_u32 {sr(S_T)}, {sr(S_T2)}, {sr(S_T)}")
    e(f"v_mul_u32_u24 {vr(A5)}, 5504, v0")
    e(f"v_add_u32 {vr(A5)}, {sr(S_T)}, {vr(A5)}")
    e(f"s_lshl_b32 {sr(S_T2)}, {sr(S_T2)}, 13")
    e(f"s_lshl_b32 {sr(S_T)}, {sr(S_W)}, 8")
    e(f"s_add_u32 {sr(S_T2)}, {sr(S_T2)}, {sr(S_T)}")
    e(f"v_lshl_add_u32 {vr(V_W2O)}, {vr(G)}, 10, {sr(S_T2)}")
    e(f"v_lshl_add_u32 {vr(V_W2O)}, {vr(N)}, 4, {vr(V_W2O)}")
    e(f"v_lshlrev_b32 {vr(A3)}, 4, v0")
    e(f"v_and_b32 {vr(T0)}, 1, v0")
    e(f"v_cmp_eq_u32 vcc, 1, {vr(T0)}")
    e(f"v_mov_b32 {vr(T0)}, 0x0c0c0100")
    e(f"v_mov_b32 {vr(T1)}, 0x01000c0c")
    e(f"v_cndmask_b32 {vr(T0)}, {vr(T0)}, {vr(T1)}, vcc")
    e(f"v_mov_b32 {vr(T1)}, 0x0c0c0302")
    e(f"v_mov_b32 {vr(T2)}, 0x03020c0c")
    e(f"v_cndmask_b32 {vr(T1)}, {vr(T1)}, {vr(T2)}, vcc")
    e(f"v_mov_b32 {vr(T2)}, 0x0c0c0c0c")
    e(f"v_lshrrev_b32 {vr(T3)}, 1, {vr(N7)}")
    for t in range(4):
        e(f"v_cmp_eq_u32 vcc, {t}, {vr(T3)}")
        e(f"v_cndmask_b32 {vr(SEL + t)}, {vr(T2)}, {vr(T0)}, vcc")
        e(f"v_cndmask_b32 {vr(SEL + 4 + t)}, {vr(T2)}, {vr(T1)}, vcc")
    e(f"v_lshrrev_b32 {vr(T0)}, 3, {vr(N)}")
    e(f"s_mul_i32 {sr(S_T)}, {sr(S_W)}, 320")
    e(f"s_add_u32 {sr(S_T)}, {sr(S_T)}, {QP}")
    e(f"v_mul_u32_u24 {vr(T1)}, 160, {vr(T0)}")
    e(f"v_lshl_add_u32 {vr(T1)}, {vr(N7)}, 4, {vr(T1)}")
    e(f"v_and_b32 {vr(T2)}, 1, {vr(G)}")
    e(f"v_lshl_add_u32 {vr(T1)}, {vr(T2)}, 3, {vr(T1)}")
    e(f"v_add_u32 {vr(T1)}, {sr(S_T)}, {vr(T1)}")
    e(f"v_lshrrev_b32 {vr(T2)}, 5, v0")
    e(f"v_cmp_eq_u32 vcc, {vr(T0)}, {vr(T2)}")
    e(f"v_mov_b32 {vr(T2)}, {DUMMY}")
    e(f"v_cndmask_b32 {vr(V_QPW)}, {vr(T2)}, {vr(T1)}, vcc")
    e(f"v_mul_u32_u24 {vr(T1)}, 160, {vr(N7)}")
    e(f"v_lshl_add_u32 {vr(T1)}, {vr(G)}, 4, {vr(T1)}")
    e(f"v_add_u32 {vr(T1)}, {QP}, {vr(T1)}")
    e(f"v_mov_b32 {vr(T2)}, {ZR}")
    e(f"v_cmp_gt_u32 vcc, 8, {vr(N)}")
    e(f"v_cndmask_b32 {vr(V_QR1)}, {vr(T2)}, {vr(T1)}, vcc")
    e(f"v_cndmask_b32 {vr(V_QR2)}, {vr(T1)}, {vr(T2)}, vcc")
    e(f"s_lshl1_add_u32 {sr(S_T)}, {sr(S_H)}, {sr(S_DH)}")
    e(f"s_lshl2_add_u32 {sr(S_T)}, {sr(S_T)}, {sr(S_CQ)}")
    e(f"s_lshl2_add_u32 {sr(S_T)}, {sr(S_T)}, {sr(S_W)}")
    e(f"s_lshl_b32 {sr(S_T)}, {sr(S_T)}, 7")
    e(f"v_lshl_add_u32 {vr(T1)}, {vr(T0)}, 6, {sr(S_T)}")
    e(f"v_lshl_add_u32 {vr(T1)}, {vr(G)}, 4, {vr(T1)}")
    e(f"v_mov_b32 {vr(T2)}, {OOB}")
    e(f"v_cmp_eq_u32 vcc, 0, {vr(N7)}")
    e(f"v_cndmask_b32 {vr(V_H2O)}, {vr(T2)}, {vr(T1)}, vcc")
    assert H2 == 0
    e(f"s_lshl2_add_u32 {sr(S_T)}, {sr(S_W)}, {FH}")
    e(f"v_lshl_add_u32 {vr(V_FHW)}, {vr(G)}, 5, {sr(S_T)}")
    e(f"s_lshl1_add_u32 {sr(S_T)}, {sr(S_H)}, {sr(S_DH)}")
    e(f"s_lshl_b32 {sr(S_T)}, {sr(S_T)}, 16")
    e(f"s_lshl_b32 {sr(S_T2)}, {sr(S_W)}, 8")
    e(f"s_add_u32 {sr(S_T)}, {sr(S_T)}, {sr(S_T2)}")
    e(f"v_lshl_add_u32 {vr(V_WOO)}, {vr(G)}, 13, {sr(S_T)}")
    e(f"v_lshl_add_u32 {vr(V_WOO)}, {vr(N)}, 4, {vr(V_WOO)}")

    e.wait(vm="x")
    stamp("x")
    for i in range(16):
        for t in range(4):
            e(f"v_perm_b32 {vr(VAF + 4 * i + t)}, {vr(VX + i // 2)}, {vr(VX + i // 2)}, {vr(SEL + 4 * (i & 1) + t)}")
    e("s_waitcnt lgkmcnt(0)")
    make_tags()
    e(f"v_mov_b32 {vr(VST)}, {sr(S_TAG)}")
    e(f"v_mov_b32 {vr(VST + 1)}, {sr(S_TAG + 1)}")
    for i in range(16):
        e.wait(vm=f"wq{i}")
        c = vr(VQD, 4) if i else "0"
        e(f"{MF} {vr(VQD, 4)}, {vr(VAF + 4 * i, 4)}, {vr(VWQ + 4 * i, 4)}, {c}")
    e(f"v_cvt_pk_bf16_f32 {vr(T1)}, {vr(VQD)}, {vr(VQD + 1)}")
    e(f"v_cvt_pk_bf16_f32 {vr(T2)}, {vr(VQD + 2)}, {vr(VQD + 3)}")
    assert T1 % 2 == 0 and T2 == T1 + 1
    e(f"ds_write_b64 {vr(V_QPW)}, {vr(T1, 2)}")
    stamp("q")
    e(f"s_mov_b32 {sr(S_T)}, 0")
    e.label("L_sync1")
    for t in range(2):
        for s in range(2):
            e(f"ds_read_b128 {vr(VQB + 8 * t + 4 * s, 4)}, {vr(V_QR2 if t else V_QR1)} offset:{64 * s}")
    e(f"s_add_u32 {sr(S_T)}, {sr(S_T)}, 1")
    e.wait(lg="all")
    e(f"v_max3_u32 {vr(T0)}, {vr(VQB)}, {vr(VQB + 2)}, {vr(VQB + 4)}")
    e(f"v_max3_u32 {vr(T1)}, {vr(VQB + 6)}, {vr(VQB + 8)}, {vr(VQB + 10)}")
    e(f"v_max3_u32 {vr(T0)}, {vr(T0)}, {vr(VQB + 12)}, {vr(VQB + 14)}")
    e(f"v_max_u32 {vr(T0)}, {vr(T0)}, {vr(T1)}")
    e(f"v_cmp_eq_u32 vcc, -1, {vr(T0)}")
    e("s_cbranch_vccz L_got1")
    e(f"s_cmp_lt_u32 {sr(S_T)}, {o['npoll']}")
    e("s_cbranch_scc1 L_sync1")
    e.label("L_got1")
    e.wait(vm="wuk")
    for t in range(2):
        for s in range(2):
            c = vr(VD2, 4) if (t or s) else "0"
            e(f"{MF} {vr(VD2, 4)}, {vr(VWUK + 8 * t + 4 * s, 4)}, {vr(VQB + 8 * t + 4 * s, 4)}, {c}")
    for ctl in ("quad_perm:[1,0,3,2]", "quad_perm:[2,3,0,1]", "row_half_mirror"):
        for r in range(4):
            e(f"v_add_f32_dpp {vr(VD2 + r)}, {vr(VD2 + r)}, {vr(VD2 + r)} {ctl} {FULL}")
    for r in range(4):
        e(f"v_mul_f32 {vr(VD2 + r)}, {f32(LOG2E / math.sqrt(128.0))}, {vr(VD2 + r)}")
    e(f"v_cvt_pk_bf16_f32 {vr(VST + 2)}, {vr(VD2)}, {vr(VD2 + 1)}")
    e(f"v_cvt_pk_bf16_f32 {vr(VST + 3)}, {vr(VD2 + 2)}, {vr(VD2 + 3)}")
    e(f"buffer_store_dwordx4 {vr(VST, 4)}, {vr(V_H2O)}, {srd(SWS)}, 0 offen sc1", "st2")
    stamp("pub2")

    VWO, VWUV, VOT = VWQ, VWUK, VAF

    def tail_loads():
        e(f"buffer_load_dwordx4 {vr(VW1, 4)}, {vr(A5)}, {srd(SW1)}, 0 offen{NT}", "ffn")
        e(f"buffer_load_dwordx4 {vr(VW1 + 4, 4)}, {vr(A5)}, {srd(SW1)}, 0 offen offset:2752{NT}", "ffn")
        e(f"buffer_load_dwordx4 {vr(VGX, 4)}, {vr(A3)}, {srd(SX)}, 0 offen", "ffn")
        e(f"buffer_load_dwordx4 {vr(VGW, 4)}, {vr(A3)}, {srd(SG)}, 0 offen", "ffn")
        e(f"buffer_load_dword {vr(VFX)}, {vr(A4)}, {srd(SX)}, 0 offen", "ffn")
        for k in range(4):
            so = ["0", sr(S_K8 + 8), sr(S_128K), sr(S_192K)][k]
            e(f"buffer_load_dwordx4 {vr(VWUV + 4 * k, 4)}, {vr(V_WUVO)}, {srd(SWUV)}, {so} offen{NT}", "wuv")
        for s in range(2):
            for jj in range(8):
                so = ["0", sr(S_4K), sr(S_K8 + 4), sr(S_36K)][2 * s + jj // 4]
                e(f"buffer_load_dwordx4 {vr(VWO + 32 * s + 4 * jj, 4)}, {vr(V_WOO)}, {srd(SWO)}, {so} offen offset:{1024 * (jj & 3)}{NT}", f"wo{s}")
        e(f"buffer_load_dwordx4 {vr(VW2, 4)}, {vr(V_W2O)}, {srd(SW2)}, 0 offen{NT}", "w2")
        e(f"buffer_load_dwordx4 {vr(VW2 + 4, 4)}, {vr(V_W2O)}, {srd(SW2)}, {sr(S_4K)} offen{NT}", "w2")

    if o["tail"] == "pub":
        tail_loads()
    V_UVW, V_UVR, V_H3O, V_MLO, V_CXW, V_M2W, V_CR1, V_CR2, V_H5O = 247, 248, 249, 250, 251, 252, 253, 254, 255
    V_FHR, V_M2R, V_MXR, VTG, VMASK = A0, A1, A2, 232, 236
    e(f"s_mul_i32 {sr(S_T)}, {sr(S_W)}, {32 * 160}")
    e(f"s_add_u32 {sr(S_T)}, {sr(S_T)}, {QA}")
    e(f"v_mul_u32_u24 {vr(T0)}, 160, {vr(L3)}")
    e(f"v_lshl_add_u32 {vr(T0)}, {vr(N7)}, 4, {vr(T0)}")
    e(f"v_add_u32 {vr(V_UVW)}, {sr(S_T)}, {vr(T0)}")
    e(f"v_lshrrev_b32 {vr(T0)}, 2, v0")
    e(f"v_mul_u32_u24 {vr(T0)}, 160, {vr(T0)}")
    e(f"v_and_b32 {vr(T1)}, 3, v0")
    e(f"v_lshl_add_u32 {vr(T0)}, {vr(T1)}, 3, {vr(T0)}")
    e(f"v_add_u32 {vr(V_UVR)}, {QA}, {vr(T0)}")
    e(f"s_lshl2_add_u32 {sr(S_T)}, {sr(S_H)}, {sr(S_CQ)}")
    e(f"s_lshl2_add_u32 {sr(S_T)}, {sr(S_T)}, {sr(S_W)}")
    e(f"s_mul_i32 {sr(S_T)}, {sr(S_T)}, {16 * 384}")
    e(f"s_add_u32 {sr(S_T)}, {sr(S_T)}, {H3}")
    e(f"v_mul_u32_u24 {vr(V_H3O)}, 384, {vr(N)}")
    e(f"v_lshl_add_u32 {vr(V_H3O)}, {vr(G)}, 4, {vr(V_H3O)}")
    e(f"v_add_u32 {vr(V_H3O)}, {sr(S_T)}, {vr(V_H3O)}")
    e(f"s_lshl2_add_u32 {sr(S_T)}, {sr(S_GAM)}, {sr(S_W)}")
    e(f"s_lshl_b32 {sr(S_T)}, {sr(S_T)}, 11")
    e(f"s_lshl4_add_u32 {sr(S_T)}, {sr(S_X)}, {sr(S_T)}")
    e(f"s_add_u32 {sr(S_T)}, {sr(S_T)}, {ML}")
    e(f"v_lshl_add_u32 {vr(V_MLO)}, {vr(G)}, 9, {sr(S_T)}")
    e(f"v_lshl_add_u32 {vr(V_MLO)}, {vr(T1)}, 7, {vr(V_MLO)}")
    e(f"s_mul_i32 {sr(S_T)}, {sr(S_W)}, 160")
    e(f"s_add_u32 {sr(S_T)}, {sr(S_T)}, {CX}")
    e(f"v_lshl_add_u32 {vr(V_CXW)}, v0, 1, {sr(S_T)}")
    e(f"s_lshl2_add_u32 {sr(S_T)}, {sr(S_W)}, {ML2}")
    e(f"v_mov_b32 {vr(V_M2W)}, {sr(S_T)}")
    e(f"v_mov_b32 {vr(V_M2R)}, {ML2}")
    e(f"v_mov_b32 {vr(V_MXR)}, {MX}")
    e(f"v_mul_u32_u24 {vr(T0)}, 160, {vr(T1)}")
    e(f"v_lshl_add_u32 {vr(T0)}, {vr(G)}, 4, {vr(T0)}")
    e(f"v_add_u32 {vr(T0)}, {CX}, {vr(T0)}")
    e(f"v_mov_b32 {vr(T2)}, {ZR}")
    e(f"v_lshrrev_b32 {vr(T3)}, 2, {vr(N)}")
    e(f"v_cmp_eq_u32 vcc, 0, {vr(T3)}")
    e(f"v_cndmask_b32 {vr(V_CR1)}, {vr(T2)}, {vr(T0)}, vcc")
    e(f"v_cmp_eq_u32 vcc, 1, {vr(T3)}")
    e(f"v_cndmask_b32 {vr(V_CR2)}, {vr(T2)}, {vr(T0)}, vcc")
    e(f"s_lshl_b32 {sr(S_T)}, {sr(S_W)}, 17")
    e(f"s_lshl_b32 {sr(S_T2)}, s2, 6")
    e(f"s_add_u32 {sr(S_T)}, {sr(S_T)}, {sr(S_T2)}")
    e(f"s_add_u32 {sr(S_T)}, {sr(S_T)}, {H5}")
    e(f"v_lshrrev_b32 {vr(T0)}, 1, {vr(N)}")
    e(f"v_lshl_add_u32 {vr(T0)}, {vr(T0)}, 14, {sr(S_T)}")
    e(f"v_and_b32 {vr(T1)}, 1, v0")
    e(f"v_lshl_add_u32 {vr(T0)}, {vr(T1)}, 5, {vr(T0)}")
    e(f"v_lshl_add_u32 {vr(T0)}, {vr(G)}, 4, {vr(T0)}")
    e(f"v_mov_b32 {vr(T2)}, {OOB}")
    e("v_cmp_gt_u32 vcc, 32, v0")
    e(f"v_cndmask_b32 {vr(V_H5O)}, {vr(T2)}, {vr(T0)}, vcc")
    e(f"v_lshlrev_b32 {vr(V_FHR)}, 5, {vr(G)}")
    e(f"v_add_u32 {vr(V_FHR)}, {FH}, {vr(V_FHR)}")
    e(f"v_mov_b32 {vr(VMASK)}, 0xfffff000")
    e.wait(lg="all")
    e("s_barrier   ; B2")
    stamp("B2")
    if o["tail"] == "B2":
        tail_loads()
    stamp("tail")
    e.wait(vm="ffn")
    FA = VQD
    FP = VQD + 8
    e(f"s_mov_b32 {sr(S_P0)}, 0x05040100")
    e(f"s_mov_b32 {sr(S_P0 + 1)}, 0x07060302")
    for t in range(4):
        e(f"v_perm_b32 {vr(FP + 2 * t)}, {vr(VW1 + 4 + t)}, {vr(VW1 + t)}, {sr(S_P0)}")
        e(f"v_perm_b32 {vr(FP + 2 * t + 1)}, {vr(VW1 + 4 + t)}, {vr(VW1 + t)}, {sr(S_P0 + 1)}")
    for f in range(8):
        e(f"v_dot2_f32_bf16 {vr(FA + f)}, {vr(FP + f)}, {vr(VFX)}, 0")
    for t in range(4):
        c = vr(VGATE) if t else "0"
        e(f"v_dot2_f32_bf16 {vr(VGATE)}, {vr(VGX + t)}, {vr(VGW + t)}, {c}")
    for f in (0, 1, 4, 5):
        e(f"v_permlane32_swap_b32 {vr(FA + f)}, {vr(FA + f + 2)}")
    for f in (0, 1, 4, 5):
        e(f"v_add_f32 {vr(FA + f)}, {vr(FA + f)}, {vr(FA + f + 2)}")
    for f in (0, 4):
        e(f"v_permlane16_swap_b32 {vr(FA + f)}, {vr(FA + f + 1)}")
    for f in (0, 4):
        e(f"v_add_f32 {vr(FA + f)}, {vr(FA + f)}, {vr(FA + f + 1)}")
    for rot in (8, 4, 2, 1):
        for v in (FA, FA + 4, VGATE):
            e(f"v_add_f32_dpp {vr(v)}, {vr(v)}, {vr(v)} row_ror:{rot} {FULL}")
    e(f"ds_write2_b32 {vr(V_FHW)}, {vr(FA)}, {vr(FA + 4)} offset0:0 offset1:4")
    allred_g("v_add_f32", VGATE, T0)
    sigmoid(VGATE, VGATE, T0)
    e(f"s_mov_b32 {sr(S_T)}, 0")
    e.label("L_sync5")
    e(f"ds_read_b128 {vr(FP, 4)}, {vr(V_MXR)}")
    e(f"s_add_u32 {sr(S_T)}, {sr(S_T)}, 1")
    e.wait(lg="all")
    e(f"v_max3_u32 {vr(T0)}, {vr(FP)}, {vr(FP + 1)}, {vr(FP + 2)}")
    e(f"v_max_u32 {vr(T0)}, {vr(T0)}, {vr(FP + 3)}")
    e(f"v_cmp_eq_u32 vcc, -1, {vr(T0)}")
    e("s_cbranch_vccz L_got5a")
    e(f"s_cmp_lt_u32 {sr(S_T)}, {o['npoll']}")
    e("s_cbranch_scc1 L_sync5")
    e.label("L_got5a")
    e.wait(vm="wuv")
    for k in range(4):
        e(f"ds_write_b128 {vr(V_UVW)}, {vr(VWUV + 4 * k, 4)} offset:{1280 * k}")
    for s in range(2):
        e.wait(vm=f"wo{s}")
        for i in range(8):
            for t in range(4):
                lo = VWO + 32 * s + 4 * (2 * t) + i // 2
                hi = VWO + 32 * s + 4 * (2 * t + 1) + i // 2
                e(f"v_perm_b32 {vr(VOT + 32 * s + 4 * i + t)}, {vr(hi)}, {vr(lo)}, {sr(S_P0 + (i & 1))}")
    e.wait(lg="all")
    e("s_barrier   ; B5")
    stamp("B5")
    e(f"ds_read_b128 {vr(FA, 4)}, {vr(V_FHR)}", "fh")
    e(f"ds_read_b128 {vr(FA + 4, 4)}, {vr(V_FHR)} offset:16", "fh")
    VUB = VWO
    for it in range(4):
        for u in range(4):
            for a in range(2):
                e(f"ds_read_b64_tr_b16 {vr(VUB + 16 * it + 4 * u + 2 * a, 2)}, {vr(V_UVR)} offset:{(32 * u + 16 * a) * 160 + 32 * it}")
    e.wait(lg="fh", vm="w2")
    for s in range(2):
        b = FA + 4 * s
        e(f"v_add_f32 {vr(b)}, {vr(b)}, {vr(b + 1)}")
        e(f"v_add_f32 {vr(b + 2)}, {vr(b + 2)}, {vr(b + 3)}")
        e(f"v_add_f32 {vr(b)}, {vr(b)}, {vr(b + 2)}")
        sigmoid(b + 1, b, b + 1)
        e(f"v_mul_f32 {vr(b)}, {vr(b)}, {vr(b + 1)}")
    e(f"v_cvt_pk_bf16_f32 {vr(T0)}, {vr(FA)}, {vr(FA + 4)}")
    for t in range(8):
        e(f"v_perm_b32 {vr(FP + t)}, {vr(T0)}, {vr(T0)}, {vr(SEL + t)}")
    e(f"{MF} {vr(VFF, 4)}, {vr(FP, 4)}, {vr(VW2, 4)}, 0")
    e(f"{MF} {vr(VFF, 4)}, {vr(FP + 4, 4)}, {vr(VW2 + 4, 4)}, {vr(VFF, 4)}")
    e(f"v_sub_f32 {vr(T0)}, 1.0, {vr(VGATE)}")
    for r in range(4):
        e(f"v_mul_f32 {vr(VFF + r)}, {vr(T0)}, {vr(VFF + r)}")
    VGA, VMLG, VD1, VCA, VM2, VDO = 164, 188, 208, 192, 164, 208
    for r in range(4):
        e(f"v_mov_b32 {vr(VTG + r)}, {sr(S_TG5 + r)}")
    e.wait(lg="all", vm="all")
    e.label("L_poll3")
    e(f"buffer_load_dwordx4 {vr(VMLG, 4)}, {vr(V_MLO)}, {srd(SWS)}, 0 offen sc1")
    for u in range(6):
        e(f"buffer_load_dwordx4 {vr(VGA + 4 * u, 4)}, {vr(V_H3O)}, {srd(SWS)}, 0 offen offset:{64 * u} sc1")
    e(f"s_add_u32 {sr(S_CNT)}, {sr(S_CNT)}, 1")
    e.wait(vm="all")
    e(f"v_cmp_ne_u64 vcc, {sr(S_TAG, 2)}, {vr(VMLG, 2)}")
    for u in range(4):
        e(f"v_cmp_ne_u32 {sr(S_P1, 2)}, {sr(S_TAG)}, {vr(VGA + 4 * u + 3)}")
        e(f"s_or_b64 vcc, vcc, {sr(S_P1, 2)}")
    for u in range(4, 6):
        e(f"v_cmp_ne_u64 {sr(S_P1, 2)}, {sr(S_TAG, 2)}, {vr(VGA + 4 * u + 2, 2)}")
        e(f"s_or_b64 vcc, vcc, {sr(S_P1, 2)}")
    e("s_cbranch_scc0 L_got3")
    e(f"s_cmp_lt_u32 {sr(S_CNT)}, {o['npoll']}")
    e("s_cbranch_scc1 L_poll3")
    e.label("L_got3")
    stamp("got3")
    for u in range(4):
        e(f"v_mov_b32 {vr(VGA + 4 * u + 3)}, {vr(VGA + 16 + 4 * (u & 1) + (u >> 1))}")
    VM, VL, VMX, VWT, VY = VMLG + 2, VMLG + 3, T0, T1, 224

    def d1_tile(it):
        for u in range(4):
            c = vr(VD1 + 4 * it, 4) if u else "0"
            e(f"{MF} {vr(VD1 + 4 * it, 4)}, {vr(VGA + 4 * u, 4)}, {vr(VUB + 16 * it + 4 * u, 4)}, {c}")

    def y_tile(it):
        e(f"v_mul_f32_dpp {vr(VY + it)}, {vr(VWT)}, {vr(VD1 + 4 * it)} quad_perm:[0,0,0,0] {FULL}")
        for r in range(1, 4):
            e(f"v_fmac_f32_dpp {vr(VY + it)}, {vr(VWT)}, {vr(VD1 + 4 * it + r)} quad_perm:[{r},{r},{r},{r}] {FULL}")

    d1_tile(0)
    e(f"v_max_f32_dpp {vr(VMX)}, {vr(VM)}, {vr(VM)} quad_perm:[1,0,3,2] {FULL}")
    e(f"v_max_f32_dpp {vr(VMX)}, {vr(VMX)}, {vr(VMX)} quad_perm:[2,3,0,1] {FULL}")
    allred_g("v_max_f32", VMX, T2)
    d1_tile(1)
    e(f"v_sub_f32 {vr(VWT)}, {vr(VM)}, {vr(VMX)}")
    e(f"v_exp_f32 {vr(VWT)}, {vr(VWT)}")
    e(f"v_mul_f32 {vr(VL)}, {vr(VL)}, {vr(VWT)}")
    y_tile(0)
    d1_tile(2)
    e(f"v_add_f32_dpp {vr(VL)}, {vr(VL)}, {vr(VL)} quad_perm:[1,0,3,2] {FULL}")
    e(f"v_add_f32_dpp {vr(VL)}, {vr(VL)}, {vr(VL)} quad_perm:[2,3,0,1] {FULL}")
    y_tile(1)
    d1_tile(3)
    allred_g("v_add_f32", VL, T2)
    e(f"ds_write2_b32 {vr(V_M2W)}, {vr(VMX)}, {vr(VL)} offset0:0 offset1:4")
    y_tile(2)
    e(f"v_permlane32_swap_b32 {vr(VY)}, {vr(VY + 2)}")
    e(f"v_add_f32 {vr(VY)}, {vr(VY)}, {vr(VY + 2)}")
    y_tile(3)
    e(f"v_permlane32_swap_b32 {vr(VY + 1)}, {vr(VY + 3)}")
    e(f"v_add_f32 {vr(VY + 1)}, {vr(VY + 1)}, {vr(VY + 3)}")
    e(f"v_permlane16_swap_b32 {vr(VY)}, {vr(VY + 1)}")
    e(f"v_add_f32 {vr(VY)}, {vr(VY)}, {vr(VY + 1)}")
    e(f"v_cvt_pk_bf16_f32 {vr(VY)}, {vr(VY)}, {vr(VY)}")
    e(f"ds_write_b16 {vr(V_CXW)}, {vr(VY)}")
    e.wait(lg="all")
    e("s_barrier   ; B6")
    stamp("B6")
    for k in range(2):
        for s in range(2):
            e(f"ds_read_b128 {vr(VCA + 8 * k + 4 * s, 4)}, {vr(V_CR2 if k else V_CR1)} offset:{64 * s}", f"ca{k}{s}")
    e(f"ds_read_b128 {vr(VM2, 4)}, {vr(V_M2R)}", "m2")
    e(f"ds_read_b128 {vr(VM2 + 4, 4)}, {vr(V_M2R)} offset:16", "m2")

    def do_tile(i):
        for k in range(2):
            for s in range(2):
                e.wait(lg=f"ca{k}{s}")
                c = vr(VDO + 4 * i, 4) if (k or s) else "0"
                e(f"{MF} {vr(VDO + 4 * i, 4)}, {vr(VCA + 8 * k + 4 * s, 4)}, {vr(VOT + 32 * s + 4 * (i + 4 * k), 4)}, {c}")

    def out_tile(i):
        for r in range(4):
            e(f"v_fmac_f32 {vr(VFF + i)}, {vr(VM2 + r)}, {vr(VDO + 4 * i + r)}")
        e(f"v_add_u32 {vr(VFF + i)}, 0x800, {vr(VFF + i)}")
        e(f"v_and_or_b32 {vr(VFF + i)}, {vr(VFF + i)}, {vr(VMASK)}, {vr(VTG + i)}")

    do_tile(0)
    e.wait(lg="m2")
    e(f"v_max3_f32 {vr(T0)}, {vr(VM2)}, {vr(VM2 + 1)}, {vr(VM2 + 2)}")
    e(f"v_max_f32 {vr(T0)}, {vr(T0)}, {vr(VM2 + 3)}")
    for r in range(4):
        e(f"v_sub_f32 {vr(VM2 + r)}, {vr(VM2 + r)}, {vr(T0)}")
    for r in range(4):
        e(f"v_exp_f32 {vr(VM2 + r)}, {vr(VM2 + r)}")
    do_tile(1)
    e(f"v_mul_f32 {vr(T0)}, {vr(VM2)}, {vr(VM2 + 4)}")
    for r in range(1, 4):
        e(f"v_fmac_f32 {vr(T0)}, {vr(VM2 + r)}, {vr(VM2 + 4 + r)}")
    e(f"v_rcp_f32 {vr(T0)}, {vr(T0)}")
    e(f"v_mul_f32 {vr(T0)}, {vr(T0)}, {vr(VGATE)}")
    for r in range(4):
        e(f"v_mul_f32 {vr(VM2 + r)}, {vr(VM2 + r)}, {vr(T0)}")
    do_tile(2)
    out_tile(0)
    out_tile(1)
    do_tile(3)
    out_tile(2)
    out_tile(3)
    e(f"buffer_store_dwordx4 {vr(VFF, 4)}, {vr(V_H5O)}, {srd(SWS)}, 0 offen sc1")
    stamp("pub5")
    e("s_barrier   ; B7")
    e("s_barrier   ; B8")
    stamps_flush(0, "qo")
    e("s_endpgm")

    e.label("L_attn")
    e.fresh()
    stamps_begin(list(range(24, 44, 2)) + list(range(48, 60, 2)))
    L3, N7, G, N, HB = 1, 2, 3, 4, 5
    V_MXW, V_PW, V_PR1, V_PR2, V_TR0, V_TR1, V_CG, V_SR, V_GO, V_QW0, V_QW1, V_QR, V_OO, V_MLW = range(6, 20)
    V_MXR = 254
    T0, T1, T2, T3 = 20, 21, 22, 23
    VC, VB, VT, VS = 24, 152, 216, 224
    VP, VO, VSD, VMLD = 152, 184, 24, 248
    VONE, VW4, VLJ = 252, 12, 253
    e(f"s_load_dwordx2 {sr(SCKV, 2)}, s[0:1], 8")
    e(f"s_load_dwordx2 {sr(SOUT, 2)}, s[0:1], 80")
    e(f"s_sub_u32 {sr(S_W)}, {sr(S_W)}, 4")
    set_srd(SCKV, 8 << 20)
    set_srd(SOUT, 1024)
    e(f"s_lshl3_add_u32 {sr(S_KC)}, {sr(S_J)}, {sr(S_X)}")
    e(f"v_lshrrev_b32 {vr(L3)}, 3, v0")
    e(f"v_and_b32 {vr(N7)}, 7, v0")
    e(f"v_lshrrev_b32 {vr(G)}, 4, v0")
    e(f"v_and_b32 {vr(N)}, 15, v0")
    e(f"v_lshrrev_b32 {vr(HB)}, 3, {vr(N)}")
    for r in range(4):
        e(f"v_mov_b32 {vr(VC + 4 + r)}, 0")
    e(f"s_lshl_b32 {sr(S_T)}, {sr(S_W)}, 10")
    e(f"s_add_u32 {sr(S_T)}, {sr(S_T)}, {PB}")
    e(f"v_lshl_add_u32 {vr(T1)}, v0, 4, {sr(S_T)}")
    e(f"ds_write_b128 {vr(T1)}, {vr(VC + 4, 4)}")
    e(f"v_lshlrev_b32 {vr(V_MXR)}, 4, {vr(N7)}")
    e(f"v_add_u32 {vr(V_MXR)}, {MX}, {vr(V_MXR)}")
    e(f"v_lshl_add_u32 {vr(V_MXW)}, {sr(S_W)}, 2, {vr(V_MXR)}")
    e(f"v_mov_b32 {vr(T2)}, -1")
    e(f"v_mov_b32 {vr(T3)}, -1")
    e(f"ds_write_b32 {vr(V_MXW)}, {vr(T2)}")
    e(f"s_mul_i32 {sr(S_T2)}, {sr(S_W)}, 320")
    e(f"s_add_u32 {sr(S_T2)}, {sr(S_T2)}, {QP}")
    e(f"v_min_u32 {vr(T1)}, 39, v0")
    e(f"v_lshl_add_u32 {vr(T1)}, {vr(T1)}, 3, {sr(S_T2)}")
    e(f"ds_write_b64 {vr(T1)}, {vr(T2, 2)}")
    e(f"v_lshl_add_u32 {vr(V_PW)}, {vr(G)}, 8, {sr(S_T)}")
    e(f"v_lshl_add_u32 {vr(V_PW)}, {vr(N7)}, 4, {vr(V_PW)}")
    e(f"v_lshl_add_u32 {vr(V_PW)}, {vr(HB)}, 3, {vr(V_PW)}")
    e(f"v_lshlrev_b32 {vr(V_PR1)}, 4, v0")
    e(f"v_xor_b32 {vr(V_PR2)}, 0x80, {vr(V_PR1)}")
    e(f"v_add_u32 {vr(V_PR1)}, {PB}, {vr(V_PR1)}")
    e(f"v_add_u32 {vr(V_PR2)}, {PB}, {vr(V_PR2)}")
    e(f"s_lshl2_add_u32 {sr(S_T)}, {sr(S_KC)}, {sr(S_W)}")
    e(f"s_lshl_b32 {sr(S_T)}, {sr(S_T)}, 15")
    e(f"v_lshl_add_u32 {vr(V_CG)}, v0, 4, {sr(S_T)}")
    e(f"s_mul_i32 {sr(S_T2)}, {sr(S_W)}, {32 * CROW}")
    e(f"v_mul_u32_u24 {vr(V_SR)}, {CROW}, {vr(N)}")
    e(f"v_lshl_add_u32 {vr(V_SR)}, {vr(G)}, 4, {vr(V_SR)}")
    e(f"v_add_u32 {vr(V_SR)}, {sr(S_T2)}, {vr(V_SR)}")
    assert CKV == 0
    e(f"s_lshl_b32 {sr(S_T)}, {sr(S_GAM)}, 15")
    e(f"s_lshl_b32 {sr(S_P0)}, {sr(S_W)}, 9")
    e(f"s_add_u32 {sr(S_T)}, {sr(S_T)}, {sr(S_P0)}")
    e(f"v_lshl_add_u32 {vr(V_GO)}, {vr(L3)}, 12, {sr(S_T)}")
    e(f"v_lshl_add_u32 {vr(V_GO)}, {vr(N7)}, 4, {vr(V_GO)}")
    e(f"s_lshl_b32 {sr(S_T)}, {sr(S_W)}, 12")
    e(f"s_add_u32 {sr(S_T)}, {sr(S_T)}, {QA}")
    e(f"v_lshl_add_u32 {vr(V_QW0)}, v0, 3, {sr(S_T)}")
    e(f"v_xor_b32 {vr(T1)}, 4, v0")
    e(f"s_add_u32 {sr(S_T)}, {sr(S_T)}, 512")
    e(f"v_lshl_add_u32 {vr(V_QW1)}, {vr(T1)}, 3, {sr(S_T)}")
    e(f"v_lshlrev_b32 {vr(T1)}, 1, {vr(HB)}")
    e(f"v_xor_b32 {vr(T1)}, {vr(T1)}, {vr(G)}")
    e(f"v_lshlrev_b32 {vr(T1)}, 4, {vr(T1)}")
    e(f"v_lshl_add_u32 {vr(T1)}, {vr(N)}, 6, {vr(T1)}")
    e(f"v_add_u32 {vr(V_QR)}, {QA}, {vr(T1)}")
    e(f"v_lshrrev_b32 {vr(T1)}, 2, v0")
    e(f"v_mul_u32_u24 {vr(T1)}, {CROW}, {vr(T1)}")
    e(f"v_and_b32 {vr(T2)}, 3, v0")
    e(f"v_lshl_add_u32 {vr(T1)}, {vr(T2)}, 3, {vr(T1)}")
    e(f"s_lshl_b32 {sr(S_T)}, {sr(S_W)}, 8")
    e(f"v_add_u32 {vr(V_TR0)}, {sr(S_T)}, {vr(T1)}")
    e(f"v_add_u32 {vr(V_TR1)}, {64 * CROW}, {vr(V_TR0)}")
    e(f"s_lshl_b32 {sr(S_T)}, {sr(S_GAM)}, 5")
    e(f"s_add_u32 {sr(S_T)}, {sr(S_T)}, {sr(S_W)}")
    e(f"s_lshl_b32 {sr(S_T)}, {sr(S_T)}, 6")
    e(f"s_add_u32 {sr(S_T)}, {sr(S_T)}, {sr(S_KC)}")
    e(f"s_mul_i32 {sr(S_T)}, {sr(S_T)}, 384")
    e(f"s_add_u32 {sr(S_T)}, {sr(S_T)}, {H3}")
    e(f"v_mul_u32_u24 {vr(V_OO)}, {256 * 384}, {vr(N7)}")
    e(f"v_add_u32 {vr(V_OO)}, {sr(S_T)}, {vr(V_OO)}")
    e(f"v_lshl_add_u32 {vr(V_OO)}, {vr(HB)}, 6, {vr(V_OO)}")
    e(f"v_lshl_add_u32 {vr(V_OO)}, {vr(G)}, 4, {vr(V_OO)}")
    e(f"s_lshl_b32 {sr(S_T)}, {sr(S_GAM)}, 6")
    e(f"s_add_u32 {sr(S_T)}, {sr(S_T)}, {sr(S_KC)}")
    e(f"s_lshl_b32 {sr(S_T)}, {sr(S_T)}, 7")
    e(f"s_add_u32 {sr(S_T)}, {sr(S_T)}, {ML}")
    e(f"s_cmp_eq_u32 {sr(S_W)}, 0")
    e(f"s_cselect_b32 {sr(S_T)}, {sr(S_T)}, {OOB}")
    e(f"v_lshl_add_u32 {vr(T1)}, v0, 4, {sr(S_T)}")
    e(f"v_mov_b32 {vr(T2)}, {OOB}")
    e("v_cmp_gt_u32 vcc, 8, v0")
    e(f"v_cndmask_b32 {vr(V_MLW)}, {vr(T2)}, {vr(T1)}, vcc")
    e(f"v_mov_b32 {vr(VONE)}, 0x3f803f80")
    e(f"s_mov_b32 m0, {sr(S_T2)}")
    e(f"s_mov_b32 {sr(S_T)}, 0")
    e("s_waitcnt lgkmcnt(0)")
    e.lg = []
    stamp("start")
    e(f"s_load_dword {sr(S_E)}, {sr(SWS, 2)}, {EPOCH}")
    e("s_barrier   ; B0")
    stamp("B0")
    for rr in range(32):
        e(f"buffer_load_dwordx4 {vr(V_CG)}, {srd(SCKV)}, {sr(S_T)} offen offset:{1024 * (rr & 3)}{NT} lds", f"c{rr // 16}")
        if rr < 31:
            if rr & 3 == 3:
                e(f"s_add_u32 m0, m0, {4096 + 32}")
                e(f"s_add_u32 {sr(S_T)}, {sr(S_T)}, 0x1000")
            else:
                e("s_add_u32 m0, m0, 32")
    stamp("dma")
    e("s_waitcnt lgkmcnt(0)")
    e.lg = []
    make_tags()
    e(f"v_mov_b32 {vr(VMLD)}, {sr(S_TAG)}")
    e(f"v_mov_b32 {vr(VMLD + 1)}, {sr(S_TAG + 1)}")
    for t in range(2):
        e.wait(vm=f"c{t}")
        for ks in range(16):
            e(f"ds_read_b128 {vr(VC + 8 * ks + 4 * t, 4)}, {vr(V_SR)} offset:{t * 16 * CROW + 64 * ks}")
    stamp("ckv")
    e.label("L_poll2")
    for kk in range(4):
        for hb in range(2):
            e(f"buffer_load_dwordx4 {vr(VB + 8 * kk + 4 * hb, 4)}, {vr(V_GO)}, {srd(SWS)}, 0 offen offset:{2048 * hb + 128 * kk} sc1")
    e(f"s_add_u32 {sr(S_CNT)}, {sr(S_CNT)}, 1")
    e.wait(vm="all")
    e(f"v_cmp_ne_u64 vcc, {sr(S_TAG, 2)}, {vr(VB, 2)}")
    for k in range(1, 8):
        e(f"v_cmp_ne_u64 {sr(S_P1, 2)}, {sr(S_TAG, 2)}, {vr(VB + 4 * k, 2)}")
        e(f"s_or_b64 vcc, vcc, {sr(S_P1, 2)}")
    e("s_cbranch_scc0 L_got2")
    e(f"s_cmp_lt_u32 {sr(S_CNT)}, {o['npoll']}")
    e("s_cbranch_scc1 L_poll2")
    e.label("L_got2")
    stamp("got2")
    for kk in range(4):
        for hb in range(2):
            e(f"ds_write_b64 {vr(V_QW1 if hb else V_QW0)}, {vr(VB + 8 * kk + 4 * hb + 2, 2)} offset:{1024 * kk}")
    e.wait(lg="all")
    e("s_barrier   ; B2")
    stamp("B2")
    for ks in range(16):
        e(f"ds_read_b128 {vr(VB + 4 * ks, 4)}, {vr(V_QR)} offset:{1024 * ks}", f"b{ks}")

    def tr_read(sp, j, q, half):
        slot = 16 * sp + 4 * j + q
        base = V_TR1 if j >= 2 else V_TR0
        off = (32 * (j & 1) + 16 * half) * CROW + 32 * (4 * sp + q)
        e(f"ds_read_b64_tr_b16 {vr(VC + 4 * slot + 2 * half, 2)}, {vr(base)} offset:{off}", f"tr{sp}{j}")

    trs = [(j, q, half) for j in range(4) for q in range(4) for half in range(2)]
    for ks in range(16):
        if ks < 8:
            e.wait(lg=f"b{ks}")
        elif ks == 8:
            e.wait(lg="all")
        for t in range(2):
            c = vr(VT + 4 * t, 4) if ks else "0"
            e(f"{MF} {vr(VT + 4 * t, 4)}, {vr(VC + 8 * ks + 4 * t, 4)}, {vr(VB + 4 * ks, 4)}, {c}")
            if ks >= 8:
                for z in range(2):
                    tr_read(0, *trs[4 * (ks - 8) + 2 * t + z])
    for r in range(4):
        e(f"v_add_f32_dpp {vr(VS + r)}, {vr(VT + r)}, {vr(VT + r)} row_ror:8 row_mask:0xf bank_mask:0x3")
    for r in range(4):
        e(f"v_add_f32_dpp {vr(VS + r)}, {vr(VT + 4 + r)}, {vr(VT + 4 + r)} row_ror:8 row_mask:0xf bank_mask:0xc")
    e(f"v_max3_f32 {vr(T0)}, {vr(VS)}, {vr(VS + 1)}, {vr(VS + 2)}")
    e(f"v_max_f32 {vr(T0)}, {vr(T0)}, {vr(VS + 3)}")
    e(f"v_max_f32_dpp {vr(T0)}, {vr(T0)}, {vr(T0)} row_ror:8 {FULL}")
    allred_g("v_max_f32", T0, T1)
    for r in range(4):
        e(f"v_sub_f32 {vr(VS + r)}, {vr(VS + r)}, {vr(T0)}")
    for r in range(4):
        e(f"v_exp_f32 {vr(VS + r)}, {vr(VS + r)}")
    e(f"v_cvt_pk_bf16_f32 {vr(T2)}, {vr(VS)}, {vr(VS + 1)}")
    e(f"v_cvt_pk_bf16_f32 {vr(T3)}, {vr(VS + 2)}, {vr(VS + 3)}")
    e(f"ds_write_b64 {vr(V_PW)}, {vr(T2, 2)}")
    e(f"ds_write_b32 {vr(V_MXW)}, {vr(T0)}")
    stamp("S")
    e(f"s_mov_b32 {sr(S_T)}, 0")
    e.label("L_sync4")
    e(f"ds_read_b128 {vr(VW4, 4)}, {vr(V_MXR)}", "mx")
    for j in range(4):
        e(f"ds_read_b128 {vr(VP + 8 * j, 4)}, {vr(V_PR1)} offset:{1024 * j}", f"p{j}")
        e(f"ds_read_b128 {vr(VP + 8 * j + 4, 4)}, {vr(V_PR2)} offset:{1024 * j}", f"p{j}")
    e(f"s_add_u32 {sr(S_T)}, {sr(S_T)}, 1")
    e.wait(lg="mx")
    e(f"v_max3_u32 {vr(T0)}, {vr(VW4)}, {vr(VW4 + 1)}, {vr(VW4 + 2)}")
    e(f"v_max_u32 {vr(T0)}, {vr(T0)}, {vr(VW4 + 3)}")
    e(f"v_cmp_eq_u32 vcc, -1, {vr(T0)}")
    e("s_cbranch_vccz L_got4")
    e(f"s_cmp_lt_u32 {sr(S_T)}, {o['npoll']}")
    e("s_cbranch_scc1 L_sync4")
    e.label("L_got4")
    stamp("P")

    def acc(sp, j, t=0):
        return VO + 32 * sp + 8 * j + 4 * t

    def pv(sp, j, q):
        a = acc(sp, j, q & 1)
        c = vr(a, 4) if q >= 2 else "0"
        e(f"{MF} {vr(a, 4)}, {vr(VC + 4 * (16 * sp + 4 * j + q), 4)}, {vr(VP + 8 * j + 4 * (q >> 1), 4)}, {c}")

    def fold(sp, j, k):
        d = vr(acc(sp, 0) + 2 * k, 2)
        w = vr(VW4 + (j & ~1), 2)
        h = j & 1
        if j == 0:
            e(f"v_pk_mul_f32 {d}, {d}, {w} op_sel:[0,{h}] op_sel_hi:[1,{h}]")
        else:
            e(f"v_pk_fma_f32 {d}, {vr(acc(sp, j) + 2 * k, 2)}, {w}, {d} op_sel:[0,{h},0] op_sel_hi:[1,{h},1]")

    def cvt(sp, k):
        d = VSD + 4 * sp + k if k < 3 else VSD + 8 + sp
        e(f"v_cvt_pk_bf16_f32 {vr(d)}, {vr(acc(sp, 0) + 2 * k)}, {vr(acc(sp, 0) + 2 * k + 1)}")

    def o_store(k):
        e(f"buffer_store_dwordx4 {vr(VSD + 4 * k, 4)}, {vr(V_OO)}, {srd(SWS)}, 0 offen offset:{128 * k} sc1")

    wcalc = [f"v_max3_f32 {vr(VMLD + 2)}, {vr(VW4)}, {vr(VW4 + 1)}, {vr(VW4 + 2)}",
             f"v_max_f32 {vr(VMLD + 2)}, {vr(VMLD + 2)}, {vr(VW4 + 3)}"]
    wcalc += [f"v_sub_f32 {vr(VW4 + r)}, {vr(VW4 + r)}, {vr(VMLD + 2)}" for r in range(4)]
    wcalc += [f"v_exp_f32 {vr(VW4 + r)}, {vr(VW4 + r)}" for r in range(4)]
    for j in range(4):
        e.wait(lg=f"p{j}")
        for q in range(4):
            pv(0, j, q)
            for half in range(2):
                tr_read(1, j, q, half)
            if wcalc:
                for z in range(2 if j == 0 else 1):
                    e(wcalc.pop(0))
            elif j >= 2:
                fold(0, j - 2, q)
    for j in range(4):
        e.wait(lg=f"tr1{j}")
        for q in range(4):
            pv(1, j, q)
            c = vr(VLJ) if q else "0"
            e(f"v_dot2_f32_bf16 {vr(VLJ)}, {vr(VP + 8 * j + q)}, {vr(VONE)}, {c}")
            if j < 2:
                fold(0, j + 2, q)
            else:
                fold(1, j - 2, q)
            if j == 0:
                e(f"v_mov_b32 {vr(VSD + (3, 7, 10, 11)[q])}, {sr(S_TAG + (q == 3))}")
            if j == 2:
                cvt(0, q)
        if j == 0:
            e(f"v_mul_f32 {vr(VMLD + 3)}, {vr(VLJ)}, {vr(VW4)}")
        else:
            e(f"v_fmac_f32 {vr(VMLD + 3)}, {vr(VLJ)}, {vr(VW4 + j)}")
        if j == 2:
            o_store(0)
    for k in range(4):
        fold(1, 2, k)
    allred_g("v_add_f32", VMLD + 3, T0)
    for k in range(4):
        fold(1, 3, k)
    for k in range(4):
        cvt(1, k)
    o_store(1)
    o_store(2)
    e(f"buffer_store_dwordx4 {vr(VMLD, 4)}, {vr(V_MLW)}, {srd(SWS)}, 0 offen sc1")
    stamp("pub3")
    e("s_barrier   ; B5")
    e("s_cmp_lt_u32 s2, 32")
    e("s_cbranch_scc1 L_reduce")
    stamps_flush(4, "attn")
    e("s_endpgm")

    e.label("L_reduce")
    V_RO, V_RW, V_RR, V_FO = 6, 7, 8, 9
    VR = 24
    e(f"s_lshl2_add_u32 {sr(S_T)}, s2, {sr(S_W)}")
    e(f"s_lshl_b32 {sr(S_T)}, {sr(S_T)}, 12")
    e(f"s_add_u32 {sr(S_T)}, {sr(S_T)}, {H5}")
    e(f"v_lshl_add_u32 {vr(V_RO)}, v0, 4, {sr(S_T)}")
    e(f"s_lshl2_add_u32 {sr(S_T)}, {sr(S_W)}, {RD}")
    e(f"v_and_b32 {vr(T0)}, 3, v0")
    e(f"v_lshl_add_u32 {vr(V_RW)}, {vr(T0)}, 6, {sr(S_T)}")
    e(f"v_lshl_add_u32 {vr(V_RW)}, {vr(G)}, 4, {vr(V_RW)}")
    e(f"v_lshlrev_b32 {vr(V_RR)}, 4, {vr(N)}")
    e(f"v_add_u32 {vr(V_RR)}, {RD}, {vr(V_RR)}")
    e(f"s_lshl_b32 {sr(S_T)}, s2, 5")
    e(f"s_cmp_eq_u32 {sr(S_W)}, 0")
    e(f"s_cselect_b32 {sr(S_T)}, {sr(S_T)}, {OOB}")
    e(f"v_lshl_add_u32 {vr(T0)}, v0, 1, {sr(S_T)}")
    e(f"v_mov_b32 {vr(T1)}, {OOB}")
    e("v_cmp_gt_u32 vcc, 16, v0")
    e(f"v_cndmask_b32 {vr(V_FO)}, {vr(T1)}, {vr(T0)}, vcc")
    V_EO, V_EV = 10, 11
    e(f"s_lshl2_add_u32 {sr(S_T)}, s2, {sr(S_W)}")
    e(f"s_cmp_eq_u32 {sr(S_T)}, 1")
    e(f"s_cselect_b32 {sr(S_T)}, 0, {OOB}")
    e(f"s_add_u32 {sr(S_T)}, {sr(S_T)}, {EPOCH}")
    e(f"v_mov_b32 {vr(T0)}, {sr(S_T)}")
    e("v_cmp_eq_u32 vcc, 0, v0")
    e(f"v_cndmask_b32 {vr(V_EO)}, {vr(T1)}, {vr(T0)}, vcc")
    e(f"s_add_u32 {sr(S_T)}, {sr(S_E)}, 1")
    e(f"v_mov_b32 {vr(V_EV)}, {sr(S_T)}")
    e(f"s_lshl_b32 {sr(S_CNT)}, {sr(S_CNT)}, 16")
    e(f"s_add_u32 {sr(S_T2)}, {sr(S_CNT)}, {o['npoll']}")
    e("s_barrier   ; B6")
    e("s_barrier   ; B7")
    stamp("B7")
    e.label("L_poll5")
    for jj in range(4):
        e(f"buffer_load_dwordx4 {vr(VR + 4 * jj, 4)}, {vr(V_RO)}, {srd(SWS)}, 0 offen offset:{1024 * jj} sc1")
    e(f"s_add_u32 {sr(S_CNT)}, {sr(S_CNT)}, 1")
    e.wait(vm="all")
    for k in range(16):
        e(f"v_xor_b32 {vr(VR + k)}, {sr(S_TG5 + (k & 3))}, {vr(VR + k)}")
    e(f"v_or3_b32 {vr(T0)}, {vr(VR)}, {vr(VR + 1)}, {vr(VR + 2)}")
    for k in range(3, 15, 2):
        e(f"v_or3_b32 {vr(T0)}, {vr(T0)}, {vr(VR + k)}, {vr(VR + k + 1)}")
    e(f"v_or_b32 {vr(T0)}, {vr(T0)}, {vr(VR + 15)}")
    e(f"v_and_b32 {vr(T0)}, 0xfff, {vr(T0)}")
    e(f"v_cmp_ne_u32 vcc, 0, {vr(T0)}")
    e("s_cmp_lg_u64 vcc, 0")
    e("s_cbranch_scc0 L_got5")
    e(f"s_cmp_lt_u32 {sr(S_CNT)}, {sr(S_T2)}")
    e("s_cbranch_scc1 L_poll5")
    e.label("L_got5")
    stamp("got5")
    for r in range(0, 4, 2):
        e(f"v_pk_add_f32 {vr(VR + r, 2)}, {vr(VR + r, 2)}, {vr(VR + 4 + r, 2)}")
        e(f"v_pk_add_f32 {vr(VR + 8 + r, 2)}, {vr(VR + 8 + r, 2)}, {vr(VR + 12 + r, 2)}")
    for r in range(0, 4, 2):
        e(f"v_pk_add_f32 {vr(VR + r, 2)}, {vr(VR + r, 2)}, {vr(VR + 8 + r, 2)}")
    e(f"v_permlane32_swap_b32 {vr(VR)}, {vr(VR + 2)}")
    e(f"v_permlane32_swap_b32 {vr(VR + 1)}, {vr(VR + 3)}")
    e(f"v_pk_add_f32 {vr(VR, 2)}, {vr(VR, 2)}, {vr(VR + 2, 2)}")
    e(f"v_permlane16_swap_b32 {vr(VR)}, {vr(VR + 1)}")
    e(f"v_add_f32 {vr(VR)}, {vr(VR)}, {vr(VR + 1)}")
    e(f"v_add_f32_dpp {vr(VR)}, {vr(VR)}, {vr(VR)} row_ror:4 {FULL}")
    e(f"v_add_f32_dpp {vr(VR)}, {vr(VR)}, {vr(VR)} row_ror:8 {FULL}")
    e(f"ds_write_b32 {vr(V_RW)}, {vr(VR)}")
    e.wait(lg="all")
    e("s_barrier   ; B8")
    e(f"ds_read_b128 {vr(VR, 4)}, {vr(V_RR)}")
    e(f"buffer_store_dword {vr(V_EV)}, {vr(V_EO)}, {srd(SWS)}, 0 offen")
    e.wait(lg="all")
    e(f"v_pk_add_f32 {vr(VR, 2)}, {vr(VR, 2)}, {vr(VR + 2, 2)}")
    e(f"v_add_f32 {vr(VR)}, {vr(VR)}, {vr(VR + 1)}")
    e(f"v_cvt_pk_bf16_f32 {vr(VR)}, {vr(VR)}, {vr(VR)}")
    e(f"buffer_store_short {vr(VR)}, {vr(V_FO)}, {srd(SOUT)}, 0 offen")
    stamp("out")
    stamps_flush(4, "red")
    e.label("L_end")
    e("s_endpgm")

    ref = open(os.path.join(os.path.dirname(os.path.abspath(__file__)), "..", "cdna_kernels", NAME + ".s.ref")).read()
    head, rest = ref.split(f"{NAME}_kernel:\n", 1)
    tail = rest[rest.index(".section .rodata"):]
    head = head.replace("; @launch grid=(2,1,1) block=(256,1,1) lds=0",
                        f"; @launch grid=(256,1,1) block=(512,1,1) lds={LDS_BYTES}")
    return head + f"{NAME}_kernel:\n" + e.text() + tail, e


STAMP_GROUPS = [("qo", slice(0, 4), slice(0, 256)), ("attn", slice(4, 8), slice(32, 256)), ("red", slice(4, 8), slice(0, 32))]


def check_intermediates(c, m, from_bf16, relerr):
    import numpy as np
    sc = LOG2E / math.sqrt(128.0)
    h2 = c.read_ws(H2, 0x20000).reshape(32, 2, 16, 8, 4)
    print("H2 tags distinct:", len(np.unique(h2[..., 0])), len(np.unique(h2[..., 1])))
    qa = from_bf16(np.ascontiguousarray(h2[..., 2:]).view(np.uint16)).reshape(32, 2, 512)
    print("H2 rel", relerr(qa, m["qa_half"] * sc))
    ml = c.read_ws(ML, 0x8000).reshape(4, 64, 8, 4)
    print("ML tags distinct:", len(np.unique(ml[..., 0])), len(np.unique(ml[..., 1])))
    mm = ml[..., 2].copy().view(np.float32).transpose(0, 2, 1).reshape(32, 64)
    ll = ml[..., 3].copy().view(np.float32).transpose(0, 2, 1).reshape(32, 64)
    s2 = (m["s"] * LOG2E).reshape(32, 64, 128)
    print("m rel", relerr(mm, s2.max(2)))
    p = np.exp2(s2 - mm[:, :, None])
    print("l rel", relerr(ll, p.sum(2)))
    op = np.einsum("hjk,jkc->hjc", p, m["ckv"].reshape(64, 128, 512))
    r3 = c.read_ws(H3, 0x300000).reshape(32, 4, 64, 3, 8, 4).copy()
    print("H3 tags distinct:", len(np.unique(r3[..., :2, :, 3])), len(np.unique(r3[..., 2, :, 2])), len(np.unique(r3[..., 2, :, 3])))
    r3[..., 0, :, 3] = r3[..., 2, :, 0]
    r3[..., 1, :, 3] = r3[..., 2, :, 1]
    h3 = from_bf16(np.ascontiguousarray(r3[..., :2, :, :]).view(np.uint16)).reshape(32, 4, 64, 128)
    idx = np.zeros(128, int)
    for sp in range(2):
        for hb in range(2):
            for g in range(4):
                for k in range(8):
                    idx[64 * sp + 32 * hb + 8 * g + k] = 64 * sp + 32 * hb + 16 * (k // 4) + 4 * g + (k & 3)
    exp3 = op.reshape(32, 64, 4, 128).transpose(0, 2, 1, 3)[..., idx]
    print("H3 rel", relerr(h3, exp3))
    h5 = c.read_ws(H5, 0x80000).reshape(32, 256, 16)
    print("H5 tags distinct:", [len(np.unique(h5[..., i::4] & 0xfff)) for i in range(4)])
    tot = (h5 & 0xfffff000).view(np.float32).astype(np.float64).sum(1).reshape(512)
    print("H5 sum rel", relerr(tot, m["out"]))


if __name__ == "__main__":
    out = sys.argv[1]
    opt = {}
    for kv in sys.argv[2:]:
        k, v = kv.split("=")
        opt[k] = int(v) if v.lstrip("-").isdigit() else v
    txt, e = build(opt)
    open(out, "w").write(txt)
    print(f"{out}: {e.count} instructions, {e.nops} pad states, lds {LDS_BYTES}")
```

```python
import math
import os
import struct
import sys

sys.path.insert(0, os.path.dirname(os.path.abspath(__file__)))
from asmlib import Asm, vr, sr

NAME = "gated_mix__compressed_kv_cla__dense_activation_silu__decode"

DEFAULTS = dict(
    stamps=0,
    nt="",
    b0="wuk",
    npoll=20000,
    hmap=1,
    cst="4,8",
    lag=3,
    uv="pre",
    o0="S",
    o1="U",
    w2="c",
    h3pair=0,
    cpf=0,
    prio=0,
)

H2 = 0x0
ML = 0x20000
H5 = 0x28000
EPOCH = 0xA8000
H3 = 0xB0000
HF = 0x3B0000
DBG = 0x3E0000
WS_BYTES = 0x400000
OOB = 0x40000000

CKV = 0
UV = 0
XS = 131072
PB = XS + 4 * 4224
QP = PB + 4 * 544
ZR = QP + 8 * 160
CX = ZR + 128
FF = CX + 4 * 160
RD = FF + 4096
GT = RD + 256
DUMMY = GT + 16
LDS_BYTES = DUMMY + 64

LOG2E = math.log2(math.e)


def f32(x):
    return "0x%08x" % struct.unpack("<I", struct.pack("<f", x))[0]


S_W = 3
SX, SWQ, SWUK, SWS, SCKV, SWUV, SWO, SW1, SW2, SG, SOUT = 4, 8, 12, 16, 20, 24, 28, 32, 36, 40, 44
S_K8 = 48
S_C0 = 64
S_X, S_J, S_GAM, S_H, S_DH, S_CQ, S_CP, S_T = 68, 69, 70, 71, 72, 73, 74, 75
S_TAG = 76
S_E = 78
S_T2 = 79
S_TG5 = 80
S_CNT = 84
S_HD = 85
S_P0, S_FS, S_T3 = 86, 88, 89


def srd(b):
    return sr(b, 4)


def build(opt):
    o = dict(DEFAULTS)
    o.update(opt)
    e = Asm()
    MF = "v_mfma_f32_16x16x32_bf16"
    FULL = "row_mask:0xf bank_mask:0xf"
    stages = [int(t) for t in str(o["cst"]).split(",")]
    assert stages[-1] == 8 and all(t % 2 == 0 for t in stages)

    def NT(k):
        return " nt" if k in str(o["nt"]) else ""

    stamp_regs = []
    stamp_used = []
    cur_grp = [None]
    hold_n = [0]

    def stamps_begin(grp, regs):
        cur_grp[0] = grp
        stamp_regs[:] = regs
        stamp_used[:] = []
        if o["stamps"]:
            e.comment("stampbegin")

    def stamp(name):
        if o.get("x_hold"):
            grp, nm, ticks = o["x_hold"].split(":")
            if name == nm and grp == cur_grp[0]:
                hold_n[0] += 1
                e("s_mov_b32 s97, 0")
                e.label(f"L_hold{hold_n[0]}")
                e("s_memrealtime s[100:101]")
                e("s_add_u32 s97, s97, 1")
                e("s_waitcnt lgkmcnt(0)")
                e.lg = []
                e("s_sub_u32 s100, s100, s98")
                e("s_cmp_gt_u32 s97, 100000")
                e(f"s_cbranch_scc1 L_holdx{hold_n[0]}")
                e(f"s_cmp_lt_u32 s100, {ticks}")
                e(f"s_cbranch_scc1 L_hold{hold_n[0]}")
                e.label(f"L_holdx{hold_n[0]}")
        if not o["stamps"] or name in str(o.get("skip", "")).split(","):
            return
        r = stamp_regs[len(stamp_used)]
        stamp_used.append(r)
        e(f"s_memrealtime {sr(r, 2)}")
        if e.lg:
            e("s_waitcnt lgkmcnt(0)") if o.get("stampwait") else None

    def stamps_flush(wave_add, setname):
        if not o["stamps"]:
            return
        e("s_waitcnt lgkmcnt(0)")
        e("v_mov_b32 v1, 0")
        for k, r in enumerate(stamp_used):
            e(f"v_writelane_b32 v1, {sr(r)}, {k}")
        e(f"v_writelane_b32 v1, {sr(S_CNT)}, 15")
        e(f"s_lshl_b32 {sr(S_T)}, s2, 3")
        e(f"s_add_u32 {sr(S_T)}, {sr(S_T)}, {sr(S_W)}")
        e(f"s_add_u32 {sr(S_T)}, {sr(S_T)}, {wave_add}")
        e(f"s_lshl_b32 {sr(S_T)}, {sr(S_T)}, 6")
        e(f"s_add_u32 {sr(S_T)}, {sr(S_T)}, {DBG}")
        e(f"v_lshl_add_u32 v2, v0, 2, {sr(S_T)}")
        e(f"v_mov_b32 v3, {OOB}")
        e("v_cmp_gt_u32 vcc, 16, v0")
        e("v_cndmask_b32 v2, v3, v2, vcc")
        e(f"buffer_store_dword v1, v2, {srd(SWS)}, 0 offen")

    def set_srd(b, nbytes):
        e(f"s_mov_b32 {sr(b + 2)}, {nbytes}")
        e(f"s_mov_b32 {sr(b + 3)}, 0x00020000")

    def make_tags():
        e(f"s_not_b32 {sr(S_TAG)}, {sr(S_E)}")
        e(f"s_mul_i32 {sr(S_TAG + 1)}, {sr(S_E)}, 0x9E3779B1")
        e(f"s_add_u32 {sr(S_TAG + 1)}, {sr(S_TAG + 1)}, 0x7F4A7C15")
        e(f"s_and_b32 {sr(S_TG5)}, {sr(S_TAG)}, 0xfff")
        e(f"s_lshr_b32 {sr(S_TG5 + 1)}, {sr(S_TAG + 1)}, 20")
        e(f"s_bfe_u32 {sr(S_TG5 + 2)}, {sr(S_TAG + 1)}, 0xc0008")
        e(f"s_bfe_u32 {sr(S_TG5 + 3)}, {sr(S_TAG)}, 0xc000c")

    def red_row(op, v, rots=(8, 4, 2, 1)):
        for rot in rots:
            e(f"{op}_dpp {vr(v)}, {vr(v)}, {vr(v)} row_ror:{rot} {FULL}")

    def red_16(op, v, t):
        e(f"v_mov_b32 {vr(t)}, {vr(v)}")
        e(f"v_permlane16_swap_b32 {vr(v)}, {vr(t)}")
        e(f"{op} {vr(v)}, {vr(v)}, {vr(t)}")

    def red_32(op, v, t):
        e(f"v_mov_b32 {vr(t)}, {vr(v)}")
        e(f"v_permlane32_swap_b32 {vr(v)}, {vr(t)}")
        e(f"{op} {vr(v)}, {vr(v)}, {vr(t)}")

    def red_all(op, v, t):
        red_row(op, v)
        red_16(op, v, t)
        red_32(op, v, t)

    def sigmoid(dst, z, t):
        e(f"v_mul_f32 {vr(t)}, {f32(-LOG2E)}, {vr(z)}")
        e(f"v_exp_f32 {vr(t)}, {vr(t)}")
        e(f"v_add_f32 {vr(t)}, 1.0, {vr(t)}")
        e(f"v_rcp_f32 {vr(dst)}, {vr(t)}")

    def tag_check(regs, tmps):
        k = len(regs) // 2
        for i in range(k):
            e(f"v_bitop3_b32 {vr(tmps[i])}, {vr(regs[2 * i])}, {vr(regs[2 * i + 1])}, {sr(S_TAG)} bitop3:0x7e")
        e(f"v_or3_b32 {vr(tmps[0])}, {vr(tmps[0])}, {vr(tmps[1])}, {vr(tmps[2])}")
        if k == 4:
            e(f"v_or_b32 {vr(tmps[0])}, {vr(tmps[0])}, {vr(tmps[3])}")
        e(f"v_cmp_ne_u32 vcc, 0, {vr(tmps[0])}")

    retries = []

    def poll_exit(name, loads, inc):
        e(f"s_cbranch_vccnz L_retry{name}")
        e.label(f"L_got{name}")
        e("s_mov_b64 exec, -1")
        retries.append((name, loads, inc))

    def emit_retries():
        for name, loads, inc in retries:
            e.label(f"L_retry{name}")
            e.fresh()
            e("s_mov_b64 exec, vcc")
            e(f"s_add_u32 {sr(S_T3)}, {sr(S_T3)}, 1")
            if o["stamps"]:
                e(f"s_add_u32 {sr(S_CNT)}, {sr(S_CNT)}, {inc}")
            e(f"s_cmp_ge_u32 {sr(S_T3)}, {o['npoll']}")
            e(f"s_cbranch_scc1 L_got{name}")
            loads()
            e.wait(vm="all")
            e(f"s_branch L_chk{name}")
        retries[:] = []

    def prio(p):
        if o["prio"]:
            e(f"s_setprio {p}")

    if o["h3pair"]:
        H3K, H3B = 256, 128
    else:
        H3K, H3B = 128, 64

    if o.get("x_hold"):
        e("s_memrealtime s[98:99]")
    e("s_cmp_ge_u32 s2, 0x100")
    e("s_cbranch_scc1 L_end")
    e(f"s_load_dwordx2 {sr(SWS, 2)}, s[0:1], 96")
    if o["cpf"]:
        e("s_getpc_b64 s[4:5]")
        e.label("L_pc")
        e("s_bfe_u32 s3, s2, 0x30003")
        e("s_lshl_b32 s3, s3, 4")
        e("v_add_u32 v1, s3, v0")
        e("v_lshlrev_b32 v1, 7, v1")
        e("v_min_u32 v1, L_end-L_pc, v1")
        e("v_mov_b32 v3, s5")
        e("v_add_co_u32 v2, vcc, s4, v1")
        e("v_addc_co_u32 v3, vcc, 0, v3, vcc")
        e("v_cmp_gt_u32 vcc, 16, v0")
        e("s_and_saveexec_b64 s[4:5], vcc")
        e("s_cbranch_execz L_nopf")
        e("global_load_dword v207, v[2:3], off", "cpf")
        e.label("L_nopf")
        e("s_mov_b64 exec, -1")
    if o.get("scramble"):
        e("s_bfe_u32 s3, s2, 0x30003")
        e("s_xor_b32 s2, s2, s3")
        e("s_lshr_b32 s3, s2, 6")
        e("s_xor_b32 s2, s2, s3")
    e("v_lshrrev_b32 v1, 6, v0")
    e("v_and_b32 v0, 63, v0")
    e(f"v_readfirstlane_b32 {sr(S_W)}, v1")
    e(f"s_and_b32 {sr(S_X)}, s2, 7")
    e(f"s_bfe_u32 {sr(S_J)}, s2, 0x30003")
    e(f"s_lshr_b32 {sr(S_GAM)}, s2, 6")
    if o["hmap"] == 0:
        e(f"s_lshl3_add_u32 {sr(S_H)}, {sr(S_GAM)}, {sr(S_X)}")
    else:
        e(f"s_lshl2_add_u32 {sr(S_H)}, {sr(S_X)}, {sr(S_GAM)}")
    e(f"s_and_b32 {sr(S_DH)}, {sr(S_J)}, 1")
    e(f"s_lshr_b32 {sr(S_CQ)}, {sr(S_J)}, 1")
    e(f"s_lshl3_add_u32 {sr(S_CP)}, {sr(S_X)}, {sr(S_J)}")
    set_srd(SWS, WS_BYTES)
    e(f"s_mov_b32 {sr(S_CNT)}, 0")
    e(f"s_mov_b32 {sr(S_T3)}, 0")
    L3, N7, G, N = 1, 2, 3, 4
    e(f"v_lshrrev_b32 {vr(L3)}, 3, v0")
    e(f"v_and_b32 {vr(N7)}, 7, v0")
    e(f"v_lshrrev_b32 {vr(G)}, 4, v0")
    e(f"v_and_b32 {vr(N)}, 15, v0")
    e(f"s_lshl1_add_u32 {sr(S_HD)}, {sr(S_H)}, {sr(S_DH)}")
    e(f"s_lshl_b32 {sr(S_HD)}, {sr(S_HD)}, 7")
    e(f"s_cmp_ge_u32 {sr(S_W)}, 4")
    e("s_cbranch_scc1 L_g1")

    stamps_begin("g0", [20, 22, 24, 26, 28, 30, 90, 92, 94, 96, 98, 100, 48, 50, 52])
    A0, A1, A2, A3, A4, A5, T0, T1, T2, T3 = 5, 6, 7, 8, 9, 10, 11, 12, 13, 14
    V_QPW, V_QR1, V_QR2, V_H2A, V_H2B = 15, 16, 17, 18, 19
    VX, SEL, VAF, VWQ, VWUK = 20, 28, 36, 100, 164
    VQD, VQB, VD2, VST = 180, 184, 200, 204
    VW1, VFX, VGX, VGW, VW2 = 212, 220, 224, 228, 232
    SELF, V_HFO, V_W2O, VGATE, V_PR, V_OO, VMASK = 240, 242, 243, 244, 245, 246, 247
    V_TR = 248

    e(f"s_load_dwordx2 {sr(SX, 2)}, s[0:1], 0")
    e(f"s_load_dwordx2 {sr(SWQ, 2)}, s[0:1], 16")
    e(f"s_load_dwordx2 {sr(SWUK, 2)}, s[0:1], 24")
    set_srd(SX, 1024)
    set_srd(SWQ, 4 << 20)
    set_srd(SWUK, 4 << 20)
    for i in range(16):
        e(f"s_mov_b32 {sr(S_K8 + i)}, {i * 8192}")
    e(f"s_lshl_b32 {sr(S_T)}, {sr(S_W)}, 8")
    e(f"v_lshl_add_u32 {vr(A0)}, {vr(L3)}, 5, {sr(S_T)}")
    e(f"s_lshl_b32 {sr(S_T)}, {sr(S_W)}, 20")
    e(f"s_add_u32 {sr(S_T)}, {sr(S_T)}, {sr(S_HD)}")
    e(f"v_lshl_add_u32 {vr(A1)}, {vr(L3)}, 17, {sr(S_T)}")
    e(f"v_lshl_add_u32 {vr(A1)}, {vr(N7)}, 4, {vr(A1)}")
    e(f"s_lshl2_add_u32 {sr(S_T)}, {sr(S_CQ)}, {sr(S_W)}")
    e(f"s_lshl_b32 {sr(S_T)}, {sr(S_T)}, 18")
    e(f"s_add_u32 {sr(S_T2)}, {sr(S_T)}, {sr(S_HD)}")
    e(f"v_lshl_add_u32 {vr(A2)}, {vr(N)}, 13, {sr(S_T2)}")
    e(f"v_lshl_add_u32 {vr(A2)}, {vr(G)}, 4, {vr(A2)}")
    e(f"s_mov_b32 {sr(S_C0)}, 0x20000")
    e("s_waitcnt lgkmcnt(0)")
    stamp("start")
    if o["b0"] == "pre":
        e("s_barrier   ; B0")
    e(f"buffer_load_dwordx4 {vr(VX, 4)}, {vr(A0)}, {srd(SX)}, 0 offen", "x")
    e(f"buffer_load_dwordx4 {vr(VX + 4, 4)}, {vr(A0)}, {srd(SX)}, 0 offen offset:16", "x")
    for i in range(16):
        e(f"buffer_load_dwordx4 {vr(VWQ + 4 * i, 4)}, {vr(A1)}, {srd(SWQ)}, {sr(S_K8 + i)} offen{NT('q')}", f"wq{i}")
    if o["b0"] == "wq":
        e("s_barrier   ; B0")
    for t in range(2):
        for s in range(2):
            so = sr(S_C0) if t else "0"
            e(f"buffer_load_dwordx4 {vr(VWUK + 8 * t + 4 * s, 4)}, {vr(A2)}, {srd(SWUK)}, {so} offen offset:{64 * s}{NT('k')}", "wuk")
    if o["b0"] == "wuk":
        e("s_barrier   ; B0")
    stamp("iss")
    e(f"s_load_dword {sr(S_E)}, {sr(SWS, 2)}, {EPOCH}")
    e(f"s_load_dwordx2 {sr(SW1, 2)}, s[0:1], 56")
    e(f"s_load_dwordx2 {sr(SW2, 2)}, s[0:1], 64")
    e(f"s_load_dwordx2 {sr(SG, 2)}, s[0:1], 72")
    e(f"s_load_dwordx2 {sr(SOUT, 2)}, s[0:1], 80")
    set_srd(SW1, 512 * 2752)
    set_srd(SW2, 1376 * 1024)
    set_srd(SG, 1024)
    set_srd(SOUT, 1024)
    e(f"v_and_b32 {vr(T0)}, 1, v0")
    e(f"v_cmp_eq_u32 vcc, 1, {vr(T0)}")
    e(f"v_mov_b32 {vr(T0)}, 0x0c0c0100")
    e(f"v_mov_b32 {vr(T1)}, 0x01000c0c")
    e(f"v_cndmask_b32 {vr(T0)}, {vr(T0)}, {vr(T1)}, vcc")
    e(f"v_mov_b32 {vr(T1)}, 0x0c0c0302")
    e(f"v_mov_b32 {vr(T2)}, 0x03020c0c")
    e(f"v_cndmask_b32 {vr(T1)}, {vr(T1)}, {vr(T2)}, vcc")
    e(f"v_mov_b32 {vr(T2)}, 0x0c0c0c0c")
    e(f"v_lshrrev_b32 {vr(T3)}, 1, {vr(N7)}")
    for t in range(4):
        e(f"v_cmp_eq_u32 vcc, {t}, {vr(T3)}")
        e(f"v_cndmask_b32 {vr(SEL + t)}, {vr(T2)}, {vr(T0)}, vcc")
        e(f"v_cndmask_b32 {vr(SEL + 4 + t)}, {vr(T2)}, {vr(T1)}, vcc")
    e(f"v_lshrrev_b32 {vr(T0)}, 3, {vr(N)}")
    e(f"s_mul_i32 {sr(S_T)}, {sr(S_W)}, 320")
    e(f"s_add_u32 {sr(S_T)}, {sr(S_T)}, {QP}")
    e(f"v_mul_u32_u24 {vr(T1)}, 160, {vr(T0)}")
    e(f"v_lshl_add_u32 {vr(T1)}, {vr(N7)}, 4, {vr(T1)}")
    e(f"v_and_b32 {vr(T3)}, 1, {vr(G)}")
    e(f"v_lshl_add_u32 {vr(T1)}, {vr(T3)}, 3, {vr(T1)}")
    e(f"v_add_u32 {vr(T1)}, {sr(S_T)}, {vr(T1)}")
    e(f"v_lshrrev_b32 {vr(A0)}, 5, v0")
    e(f"v_cmp_eq_u32 vcc, {vr(T0)}, {vr(A0)}")
    e(f"v_mov_b32 {vr(T2)}, {DUMMY}")
    e(f"v_cndmask_b32 {vr(V_QPW)}, {vr(T2)}, {vr(T1)}, vcc")
    e(f"v_mul_u32_u24 {vr(T1)}, 160, {vr(N7)}")
    e(f"v_lshl_add_u32 {vr(T1)}, {vr(G)}, 4, {vr(T1)}")
    e(f"v_add_u32 {vr(T1)}, {QP}, {vr(T1)}")
    e(f"v_mov_b32 {vr(T2)}, {ZR}")
    e(f"v_cmp_gt_u32 vcc, 8, {vr(N)}")
    e(f"v_cndmask_b32 {vr(V_QR1)}, {vr(T2)}, {vr(T1)}, vcc")
    e(f"v_cndmask_b32 {vr(V_QR2)}, {vr(T1)}, {vr(T2)}, vcc")
    e(f"s_lshl2_add_u32 {sr(S_T)}, {sr(S_H)}, {sr(S_CQ)}")
    e(f"s_lshl2_add_u32 {sr(S_T)}, {sr(S_T)}, {sr(S_W)}")
    e(f"s_lshl2_add_u32 {sr(S_T)}, {sr(S_T)}, {sr(S_DH)}")
    e(f"s_lshl_b32 {sr(S_T)}, {sr(S_T)}, 6")
    e(f"v_lshl_add_u32 {vr(T1)}, {vr(T0)}, 5, {sr(S_T)}")
    e(f"v_lshl_add_u32 {vr(T1)}, {vr(A0)}, 4, {vr(T1)}")
    e(f"v_mov_b32 {vr(T2)}, {OOB}")
    e(f"v_and_b32 {vr(A0)}, 0x17, v0")
    e(f"v_cmp_eq_u32 vcc, 0, {vr(A0)}")
    e(f"v_cndmask_b32 {vr(V_H2A)}, {vr(T2)}, {vr(T1)}, vcc")
    e(f"v_cmp_eq_u32 vcc, 16, {vr(A0)}")
    e(f"v_cndmask_b32 {vr(V_H2B)}, {vr(T2)}, {vr(T1)}, vcc")
    assert H2 == 0

    e.wait(vm="x")
    for i in range(16):
        for t in range(4):
            e(f"v_perm_b32 {vr(VAF + 4 * i + t)}, {vr(VX + i // 2)}, {vr(VX + i // 2)}, {vr(SEL + 4 * (i & 1) + t)}")
    e("s_waitcnt lgkmcnt(0)")
    make_tags()
    for r in (0, 1, 4, 5):
        e(f"v_mov_b32 {vr(VST + r)}, {sr(S_TAG + (r & 1))}")
    e(f"s_lshr_b32 {sr(S_T)}, s2, 3")
    e(f"s_mul_i32 {sr(S_FS)}, {sr(S_X)}, 22")
    e(f"s_add_u32 {sr(S_FS)}, {sr(S_FS)}, {sr(S_T)}")
    e(f"s_cmp_lt_u32 {sr(S_T)}, 22")
    e(f"s_cselect_b32 {sr(S_FS)}, {sr(S_FS)}, 0x20000")
    e(f"s_cmp_lt_u32 {sr(S_FS)}, 172")
    e(f"s_cselect_b32 {sr(S_FS)}, {sr(S_FS)}, 0x20000")
    e(f"s_and_b32 {sr(S_T)}, {sr(S_FS)}, 3")
    e(f"s_lshl2_add_u32 {sr(S_T)}, {sr(S_T)}, {sr(S_W)}")
    e(f"s_lshl_b32 {sr(S_T2)}, {sr(S_T)}, 6")
    e(f"v_lshl_add_u32 {vr(A4)}, {vr(G)}, 4, {sr(S_T2)}")
    e(f"s_lshl_b32 {sr(S_T2)}, {sr(S_T)}, 5")
    e(f"s_add_u32 {sr(S_P0)}, {sr(S_T2)}, {HF}")
    e(f"s_mul_i32 {sr(S_T)}, {sr(S_T)}, {16 * 5504}")
    e(f"s_lshr_b32 {sr(S_T2)}, {sr(S_FS)}, 2")
    e(f"s_lshl_b32 {sr(S_T2)}, {sr(S_T2)}, 7")
    e(f"s_add_u32 {sr(S_T)}, {sr(S_T)}, {sr(S_T2)}")
    e(f"v_mul_u32_u24 {vr(A5)}, {4 * 5504}, {vr(G)}")
    e(f"v_lshl_add_u32 {vr(A5)}, {vr(N)}, 3, {vr(A5)}")
    e(f"v_add_u32 {vr(A5)}, {sr(S_T)}, {vr(A5)}")
    e(f"s_lshr_b32 {sr(S_T2)}, {sr(S_T2)}, 4")
    e(f"v_lshrrev_b32 {vr(T0)}, 1, {vr(N)}")
    e(f"v_add_u32 {vr(T0)}, {sr(S_T2)}, {vr(T0)}")
    e(f"v_lshl_add_u32 {vr(T1)}, {vr(T0)}, 10, {sr(S_P0)}")
    e(f"v_and_b32 {vr(T2)}, 1, v0")
    e(f"v_lshl_add_u32 {vr(T1)}, {vr(T2)}, 4, {vr(T1)}")
    e(f"v_add_u32 {vr(T2)}, {(512 - 172 * 1024) & 0xffffffff}, {vr(T1)}")
    e(f"v_cmp_lt_u32 vcc, 171, {vr(T0)}")
    e(f"v_cndmask_b32 {vr(T1)}, {vr(T1)}, {vr(T2)}, vcc")
    e(f"v_cndmask_b32 {vr(T0)}, 0, 1, vcc")
    e(f"v_mov_b32 {vr(T2)}, {OOB}")
    e(f"v_cmp_eq_u32 vcc, {vr(T0)}, {vr(G)}")
    e(f"v_cndmask_b32 {vr(V_HFO)}, {vr(T2)}, {vr(T1)}, vcc")
    e(f"s_lshl_b32 {sr(S_T2)}, {sr(S_FS)}, 13")
    e(f"s_lshl_b32 {sr(S_T)}, {sr(S_W)}, 8")
    e(f"s_add_u32 {sr(S_T2)}, {sr(S_T2)}, {sr(S_T)}")
    e(f"v_lshl_add_u32 {vr(V_W2O)}, {vr(G)}, 10, {sr(S_T2)}")
    e(f"v_lshl_add_u32 {vr(V_W2O)}, {vr(N)}, 4, {vr(V_W2O)}")
    e(f"v_lshlrev_b32 {vr(A3)}, 4, v0")
    for q in range(1, 4):
        e(f"s_mov_b32 {sr(S_C0 + q)}, {5504 * q}")
    e(f"s_mov_b32 {sr(S_C0)}, 0x1000")
    for i in range(16):
        e.wait(vm=f"wq{i}")
        c = vr(VQD, 4) if i else "0"
        e(f"{MF} {vr(VQD, 4)}, {vr(VAF + 4 * i, 4)}, {vr(VWQ + 4 * i, 4)}, {c}")
    e(f"v_cvt_pk_bf16_f32 {vr(T1)}, {vr(VQD)}, {vr(VQD + 1)}")
    e(f"v_cvt_pk_bf16_f32 {vr(T2)}, {vr(VQD + 2)}, {vr(VQD + 3)}")
    assert T1 % 2 == 0 and T2 == T1 + 1
    e(f"ds_write_b64 {vr(V_QPW)}, {vr(T1, 2)}")
    stamp("q")
    e(f"s_mov_b32 {sr(S_T)}, 0")
    e.label("L_sync1")
    for t in range(2):
        for s in range(2):
            e(f"ds_read_b128 {vr(VQB + 8 * t + 4 * s, 4)}, {vr(V_QR2 if t else V_QR1)} offset:{64 * s}")
    e(f"s_add_u32 {sr(S_T)}, {sr(S_T)}, 1")
    e.wait(lg="all")
    e(f"v_max3_u32 {vr(T0)}, {vr(VQB)}, {vr(VQB + 2)}, {vr(VQB + 4)}")
    e(f"v_max3_u32 {vr(T1)}, {vr(VQB + 6)}, {vr(VQB + 8)}, {vr(VQB + 10)}")
    e(f"v_max3_u32 {vr(T0)}, {vr(T0)}, {vr(VQB + 12)}, {vr(VQB + 14)}")
    e(f"v_max_u32 {vr(T0)}, {vr(T0)}, {vr(T1)}")
    e(f"v_cmp_eq_u32 vcc, -1, {vr(T0)}")
    e("s_cbranch_vccz L_got1")
    e(f"s_cmp_lt_u32 {sr(S_T)}, {o['npoll']}")
    e("s_cbranch_scc1 L_sync1")
    e.label("L_got1")
    e.wait(vm="wuk")
    for t in range(2):
        for s in range(2):
            c = vr(VD2, 4) if (t or s) else "0"
            e(f"{MF} {vr(VD2, 4)}, {vr(VWUK + 8 * t + 4 * s, 4)}, {vr(VQB + 8 * t + 4 * s, 4)}, {c}")
    for ctl in ("quad_perm:[1,0,3,2]", "quad_perm:[2,3,0,1]", "row_half_mirror"):
        for r in range(4):
            e(f"v_add_f32_dpp {vr(VD2 + r)}, {vr(VD2 + r)}, {vr(VD2 + r)} {ctl} {FULL}")
    for r in range(4):
        e(f"v_mul_f32 {vr(VD2 + r)}, {f32(LOG2E / math.sqrt(128.0))}, {vr(VD2 + r)}")
    e(f"v_cvt_pk_bf16_f32 {vr(VST + 2)}, {vr(VD2)}, {vr(VD2 + 1)}")
    e(f"v_cvt_pk_bf16_f32 {vr(VST + 3)}, {vr(VD2 + 2)}, {vr(VD2 + 3)}")
    e(f"buffer_store_dwordx4 {vr(VST, 4)}, {vr(V_H2A)}, {srd(SWS)}, 0 offen sc1", "st2")
    e(f"buffer_store_dwordx4 {vr(VST + 2, 4)}, {vr(V_H2B)}, {srd(SWS)}, 0 offen offset:128 sc1", "st2")
    stamp("pub2")

    def w2_loads():
        e(f"buffer_load_dwordx4 {vr(VW2, 4)}, {vr(V_W2O)}, {srd(SW2)}, 0 offen{NT('f')}", "w2")
        e(f"buffer_load_dwordx4 {vr(VW2 + 4, 4)}, {vr(V_W2O)}, {srd(SW2)}, {sr(S_C0)} offen{NT('f')}", "w2")

    for q in range(4):
        so = sr(S_C0 + q) if q else "0"
        e(f"buffer_load_dwordx2 {vr(VW1 + 2 * q, 2)}, {vr(A5)}, {srd(SW1)}, {so} offen{NT('f')}", "ffn")
    e(f"buffer_load_dwordx4 {vr(VFX, 4)}, {vr(A4)}, {srd(SX)}, 0 offen", "ffn")
    e(f"buffer_load_dwordx4 {vr(VGX, 4)}, {vr(A3)}, {srd(SX)}, 0 offen", "ffn")
    e(f"buffer_load_dwordx4 {vr(VGW, 4)}, {vr(A3)}, {srd(SG)}, 0 offen", "ffn")
    if o["w2"] == "pub2":
        w2_loads()
    VTRF, VP, VO, VSD = 36, 164, 180, 196
    e(f"v_lshrrev_b32 {vr(T0)}, 2, v0")
    e(f"s_lshl_b32 {sr(S_T)}, {sr(S_W)}, 15")
    e(f"v_lshl_add_u32 {vr(T1)}, {vr(T0)}, 8, {sr(S_T)}")
    e(f"v_and_b32 {vr(T0)}, 31, v0")
    e(f"v_lshl_add_u32 {vr(V_TR)}, {vr(T0)}, 3, {vr(T1)}")
    for t in range(1, 8):
        e(f"v_xor_b32 {vr(V_TR + t)}, {t << 5}, {vr(V_TR)}")
    e(f"v_lshrrev_b32 {vr(T0)}, 5, v0")
    e(f"v_mul_u32_u24 {vr(T0)}, 272, {vr(T0)}")
    e(f"v_lshl_add_u32 {vr(T0)}, {vr(T3)}, 7, {vr(T0)}")
    e(f"v_lshl_add_u32 {vr(T0)}, {vr(N7)}, 4, {vr(T0)}")
    e(f"v_add_u32 {vr(V_PR)}, {PB}, {vr(T0)}")
    e(f"s_lshl_b32 {sr(S_T)}, {sr(S_GAM)}, 5")
    e(f"s_add_u32 {sr(S_T)}, {sr(S_T)}, {sr(S_W)}")
    e(f"s_lshl_b32 {sr(S_T)}, {sr(S_T)}, 6")
    if o["h3pair"]:
        e(f"s_and_b32 {sr(S_T2)}, {sr(S_CP)}, 62")
        e(f"s_add_u32 {sr(S_T)}, {sr(S_T)}, {sr(S_T2)}")
        e(f"s_mul_i32 {sr(S_T)}, {sr(S_T)}, 384")
        e(f"s_and_b32 {sr(S_T2)}, {sr(S_CP)}, 1")
        e(f"s_lshl_b32 {sr(S_T2)}, {sr(S_T2)}, 6")
        e(f"s_add_u32 {sr(S_T)}, {sr(S_T)}, {sr(S_T2)}")
    else:
        e(f"s_add_u32 {sr(S_T)}, {sr(S_T)}, {sr(S_CP)}")
        e(f"s_mul_i32 {sr(S_T)}, {sr(S_T)}, 384")
    e(f"s_add_u32 {sr(S_T)}, {sr(S_T)}, {H3}")
    e(f"v_mul_u32_u24 {vr(V_OO)}, {256 * 384}, {vr(N7)}")
    e(f"v_add_u32 {vr(V_OO)}, {sr(S_T)}, {vr(V_OO)}")
    e(f"v_lshrrev_b32 {vr(T0)}, 3, {vr(N)}")
    e(f"v_lshl_add_u32 {vr(V_OO)}, {vr(T0)}, {H3B.bit_length() - 1}, {vr(V_OO)}")
    e(f"v_lshl_add_u32 {vr(V_OO)}, {vr(G)}, 4, {vr(V_OO)}")
    e(f"v_cmp_lt_u32 vcc, 3, {vr(N7)}")
    for t in range(2):
        e(f"v_cndmask_b32 {vr(SELF + t)}, {vr(SEL + t)}, {vr(SEL + 6 + t)}, vcc")
    e(f"v_mov_b32 {vr(VMASK)}, 0xfffff000")
    for r, k in ((3, 0), (4, 0), (10, 0), (11, 1)):
        e(f"v_mov_b32 {vr(VSD + r)}, {sr(S_TAG + k)}")
    done = 0
    for si, st in enumerate(stages):
        e(f"s_barrier   ; Bc{si}")
        if st == 8:
            stamp("Bc")
        for kt in range(done, st):
            for t in range(8):
                e(f"ds_read_b64_tr_b16 {vr(VTRF + 16 * t + 2 * kt, 2)}, {vr(V_TR + t)} offset:{4096 * kt}")
        done = st
    if o["w2"] == "c":
        w2_loads()
    VFA, VFD = 20, 208
    e.wait(vm="ffn")
    for ii in range(2):
        for t in range(4):
            x = VFX + 2 * ii + (t >> 1)
            e(f"v_perm_b32 {vr(VFA + 4 * ii + t)}, {vr(x)}, {vr(x)}, {vr(SELF + (t & 1))}")
    for ii in range(2):
        c = vr(VFD, 4) if ii else "0"
        e(f"{MF} {vr(VFD, 4)}, {vr(VFA + 4 * ii, 4)}, {vr(VW1 + 4 * ii, 4)}, {c}")
    for t in range(4):
        c = vr(VGATE) if t else "0"
        e(f"v_dot2_f32_bf16 {vr(VGATE)}, {vr(VGX + t)}, {vr(VGW + t)}, {c}")
    red_row("v_add_f32", VGATE, (8, 4))
    for r in range(4):
        e(f"v_add_u32 {vr(VFD + r)}, 0x800, {vr(VFD + r)}")
    for r in range(4):
        e(f"v_and_or_b32 {vr(VFD + r)}, {vr(VFD + r)}, {vr(VMASK)}, {sr(S_TG5 + r)}")
    e(f"buffer_store_dwordx4 {vr(VFD, 4)}, {vr(V_HFO)}, {srd(SWS)}, 0 offen sc1", "stf")
    e("s_barrier   ; Bs")
    red_row("v_add_f32", VGATE, (2, 1))
    red_16("v_add_f32", VGATE, T0)
    red_32("v_add_f32", VGATE, T0)
    sigmoid(VGATE, VGATE, T0)
    e(f"v_mov_b32 {vr(T0)}, {GT}")
    e(f"ds_write_b32 {vr(T0)}, {vr(VGATE)}")
    e(f"v_cmp_lt_u32 vcc, 7, {vr(N)}")
    e.wait(lg="all")
    prio(1)
    e("s_barrier   ; Bp")
    stamp("P")
    for j in range(4):
        e(f"ds_read_b128 {vr(VP + 4 * j, 4)}, {vr(V_PR)} offset:{544 * j}", f"p{j}")
    DST = [(0, 1), (2, 5), (6, 7), (8, 9)]

    def pv_fin(p):
        a = VO + 8 * (p & 1)
        ops = []
        for k in range(2):
            ops.append(f"v_cvt_pk_bf16_f32 {vr(T0 + k)}, {vr(a + 2 * k)}, {vr(a + 2 * k + 1)}")
        for k in range(2):
            ops.append(f"v_cvt_pk_bf16_f32 {vr(T2 + k)}, {vr(a + 4 + 2 * k)}, {vr(a + 4 + 2 * k + 1)}")
        for k in range(2):
            ops.append(f"v_cndmask_b32 {vr(VSD + DST[p][k])}, {vr(T0 + k)}, {vr(T2 + k)}, vcc")
        if p >= 1:
            k = p - 1
            ops.append(f"buffer_store_dwordx4 {vr(VSD + 4 * k, 4)}, {vr(V_OO)}, {srd(SWS)}, 0 offen offset:{H3K * k} sc1")
        return ops

    for p in range(4):
        fill = pv_fin(p - 1) if p else []
        for j in range(4):
            if p == 0:
                e.wait(lg=f"p{j}")
            for hb in range(2):
                t = 4 * (p >> 1) + 2 * hb + (p & 1)
                a = VO + 8 * (p & 1) + 4 * hb
                c = vr(a, 4) if j else "0"
                e(f"{MF} {vr(a, 4)}, {vr(VTRF + 16 * t + 4 * j, 4)}, {vr(VP + 4 * j, 4)}, {c}   ; mfma16")
                if 2 * j + hb >= 2:
                    for z in range(2):
                        if fill:
                            e(fill.pop(0))
    for op in pv_fin(3):
        e(op)
    stamp("pub3")
    prio(0)
    e("s_barrier   ; Bu")
    if o["w2"] == "pub3":
        w2_loads()
    VH, VFP, VFF, V_HFR, V_FFW = 36, 40, 48, A0, A1
    e(f"s_lshl_b32 {sr(S_T)}, {sr(S_FS)}, 10")
    e(f"s_add_u32 {sr(S_T)}, {sr(S_T)}, {HF}")
    e(f"v_add_u32 {vr(V_HFR)}, {sr(S_T)}, {vr(A3)}")
    e(f"s_lshl_b32 {sr(S_T)}, {sr(S_W)}, 10")
    e(f"s_add_u32 {sr(S_T)}, {sr(S_T)}, {FF}")
    e(f"v_add_u32 {vr(V_FFW)}, {sr(S_T)}, {vr(A3)}")
    for r in range(4):
        e(f"v_mov_b32 {vr(VFF + r)}, 0")
    e(f"s_cmp_ge_u32 {sr(S_FS)}, 172")
    e("s_cbranch_scc1 L_noffn")

    def hf_loads():
        e(f"buffer_load_dwordx4 {vr(VH, 4)}, {vr(V_HFR)}, {srd(SWS)}, 0 offen sc1")

    hf_loads()
    e.wait(vm="all")
    e.label("L_chkF")
    for r in range(4):
        e(f"v_xor_b32 {vr(VH + r)}, {sr(S_TG5 + r)}, {vr(VH + r)}")
    e(f"v_or3_b32 {vr(T0)}, {vr(VH)}, {vr(VH + 1)}, {vr(VH + 2)}")
    e(f"v_or_b32 {vr(T0)}, {vr(T0)}, {vr(VH + 3)}")
    e(f"v_and_b32 {vr(T0)}, 0xfff, {vr(T0)}")
    e(f"v_cmp_ne_u32 vcc, 0, {vr(T0)}")
    poll_exit("F", hf_loads, 1)
    e(f"v_permlane32_swap_b32 {vr(VH)}, {vr(VH + 2)}")
    e(f"v_permlane32_swap_b32 {vr(VH + 1)}, {vr(VH + 3)}")
    e(f"v_add_f32 {vr(VH)}, {vr(VH)}, {vr(VH + 2)}")
    e(f"v_add_f32 {vr(VH + 1)}, {vr(VH + 1)}, {vr(VH + 3)}")
    e(f"v_permlane16_swap_b32 {vr(VH)}, {vr(VH + 1)}")
    e(f"v_add_f32 {vr(VH)}, {vr(VH)}, {vr(VH + 1)}")
    red_row("v_add_f32", VH, (8, 4, 2))
    sigmoid(T0, VH, T0)
    e(f"v_mul_f32 {vr(VH)}, {vr(VH)}, {vr(T0)}")
    e(f"v_mov_b32_dpp {vr(T0)}, {vr(VH)} quad_perm:[0,0,2,2] {FULL}")
    e(f"v_mov_b32_dpp {vr(T1)}, {vr(VH)} quad_perm:[1,1,3,3] {FULL}")
    e(f"v_cvt_pk_bf16_f32 {vr(T0)}, {vr(T0)}, {vr(T1)}")
    for t in range(8):
        e(f"v_perm_b32 {vr(VFP + t)}, {vr(T0)}, {vr(T0)}, {vr(SEL + t)}")
    e(f"{MF} {vr(VFF, 4)}, {vr(VFP, 4)}, {vr(VW2, 4)}, 0")
    e(f"{MF} {vr(VFF, 4)}, {vr(VFP + 4, 4)}, {vr(VW2 + 4, 4)}, {vr(VFF, 4)}")
    e(f"v_sub_f32 {vr(T0)}, 1.0, {vr(VGATE)}")
    for r in range(4):
        e(f"v_mul_f32 {vr(VFF + r)}, {vr(T0)}, {vr(VFF + r)}")
    e.label("L_noffn")
    e(f"ds_write_b128 {vr(V_FFW)}, {vr(VFF, 4)}")
    e.wait(lg="all")
    stamp("ffn")
    e("s_cmp_ge_u32 s2, 224")
    e("s_cbranch_scc1 L_reduce")
    e("s_barrier   ; B6")
    stamps_flush(0, "g0")
    e("s_endpgm")

    e.label("L_reduce")
    V_RO, V_RW, V_RR, V_FO, V_EO, V_EV = 5, 6, 7, 8, 9, 10
    VR = 24
    e(f"s_sub_u32 {sr(S_T2)}, s2, 224")
    e(f"s_lshl2_add_u32 {sr(S_P0)}, {sr(S_T2)}, {sr(S_W)}")
    e(f"s_lshl_b32 {sr(S_T)}, {sr(S_P0)}, 12")
    e(f"s_add_u32 {sr(S_T)}, {sr(S_T)}, {H5}")
    e(f"v_lshl_add_u32 {vr(V_RO)}, v0, 4, {sr(S_T)}")
    e(f"s_lshl2_add_u32 {sr(S_T)}, {sr(S_W)}, {RD}")
    e(f"v_and_b32 {vr(T0)}, 3, v0")
    e(f"v_lshl_add_u32 {vr(V_RW)}, {vr(T0)}, 6, {sr(S_T)}")
    e(f"v_lshl_add_u32 {vr(V_RW)}, {vr(G)}, 4, {vr(V_RW)}")
    e(f"v_lshlrev_b32 {vr(V_RR)}, 4, {vr(N)}")
    e(f"v_add_u32 {vr(V_RR)}, {RD}, {vr(V_RR)}")
    e(f"s_lshl_b32 {sr(S_T)}, {sr(S_T2)}, 5")
    e(f"s_cmp_eq_u32 {sr(S_W)}, 0")
    e(f"s_cselect_b32 {sr(S_T)}, {sr(S_T)}, {OOB}")
    e(f"v_lshl_add_u32 {vr(T0)}, v0, 1, {sr(S_T)}")
    e(f"v_mov_b32 {vr(T1)}, {OOB}")
    e("v_cmp_gt_u32 vcc, 16, v0")
    e(f"v_cndmask_b32 {vr(V_FO)}, {vr(T1)}, {vr(T0)}, vcc")
    e(f"s_cmp_eq_u32 {sr(S_P0)}, 1")
    e(f"s_cselect_b32 {sr(S_T)}, 0, {OOB}")
    e(f"s_add_u32 {sr(S_T)}, {sr(S_T)}, {EPOCH}")
    e(f"v_mov_b32 {vr(T0)}, {sr(S_T)}")
    e("v_cmp_eq_u32 vcc, 0, v0")
    e(f"v_cndmask_b32 {vr(V_EO)}, {vr(T1)}, {vr(T0)}, vcc")
    e(f"s_add_u32 {sr(S_T)}, {sr(S_E)}, 1")
    e(f"v_mov_b32 {vr(V_EV)}, {sr(S_T)}")
    e("s_barrier   ; B6")
    e("s_barrier   ; B7")
    stamp("B7")

    def h5_loads():
        for jj in range(4):
            e(f"buffer_load_dwordx4 {vr(VR + 4 * jj, 4)}, {vr(V_RO)}, {srd(SWS)}, 0 offen offset:{1024 * jj} sc1")

    h5_loads()
    e.wait(vm="all")
    e.label("L_chk5")
    for k in range(16):
        e(f"v_xor_b32 {vr(VR + k)}, {sr(S_TG5 + (k & 3))}, {vr(VR + k)}")
    e(f"v_or3_b32 {vr(T0)}, {vr(VR)}, {vr(VR + 1)}, {vr(VR + 2)}")
    e(f"v_or3_b32 {vr(T1)}, {vr(VR + 3)}, {vr(VR + 4)}, {vr(VR + 5)}")
    for k in range(6, 14, 4):
        e(f"v_or3_b32 {vr(T0)}, {vr(T0)}, {vr(VR + k)}, {vr(VR + k + 1)}")
        e(f"v_or3_b32 {vr(T1)}, {vr(T1)}, {vr(VR + k + 2)}, {vr(VR + k + 3)}")
    e(f"v_or3_b32 {vr(T0)}, {vr(T0)}, {vr(VR + 14)}, {vr(VR + 15)}")
    e(f"v_bitop3_b32 {vr(T0)}, {vr(T0)}, {vr(T1)}, {vr(VMASK)} bitop3:0x54")
    e(f"v_cmp_ne_u32 vcc, 0, {vr(T0)}")
    poll_exit("5", h5_loads, 0x10000)
    stamp("got5")
    for r in range(0, 4, 2):
        e(f"v_pk_add_f32 {vr(VR + r, 2)}, {vr(VR + r, 2)}, {vr(VR + 4 + r, 2)}")
        e(f"v_pk_add_f32 {vr(VR + 8 + r, 2)}, {vr(VR + 8 + r, 2)}, {vr(VR + 12 + r, 2)}")
    for r in range(0, 4, 2):
        e(f"v_pk_add_f32 {vr(VR + r, 2)}, {vr(VR + r, 2)}, {vr(VR + 8 + r, 2)}")
    e(f"v_permlane32_swap_b32 {vr(VR)}, {vr(VR + 2)}")
    e(f"v_permlane32_swap_b32 {vr(VR + 1)}, {vr(VR + 3)}")
    e(f"v_pk_add_f32 {vr(VR, 2)}, {vr(VR, 2)}, {vr(VR + 2, 2)}")
    e(f"v_permlane16_swap_b32 {vr(VR)}, {vr(VR + 1)}")
    e(f"v_add_f32 {vr(VR)}, {vr(VR)}, {vr(VR + 1)}")
    red_row("v_add_f32", VR, (4, 8))
    e(f"ds_write_b32 {vr(V_RW)}, {vr(VR)}")
    e.wait(lg="all")
    e("s_barrier   ; B8")
    e(f"ds_read_b128 {vr(VR, 4)}, {vr(V_RR)}")
    e(f"buffer_store_dword {vr(V_EV)}, {vr(V_EO)}, {srd(SWS)}, 0 offen")
    e.wait(lg="all")
    e(f"v_pk_add_f32 {vr(VR, 2)}, {vr(VR, 2)}, {vr(VR + 2, 2)}")
    e(f"v_add_f32 {vr(VR)}, {vr(VR)}, {vr(VR + 1)}")
    e(f"v_cvt_pk_bf16_f32 {vr(VR)}, {vr(VR)}, {vr(VR)}")
    e(f"buffer_store_short {vr(VR)}, {vr(V_FO)}, {srd(SOUT)}, 0 offen")
    stamp("out")
    stamps_flush(0, "red")
    e("s_endpgm")
    emit_retries()

    e.label("L_g1")
    e.fresh()
    stamps_begin("g1", [4, 6, 8, 10, 12, 14, 32, 34, 36, 38, 40, 42, 44, 46, 90])
    V_CG, V_SR, V_GO, V_XW, V_XR, V_PW, V_MLW, V_WUVO, V_WOO = 6, 8, 12, 13, 14, 15, 16, 17, 18
    HB = 5
    T0, T1, T2, T3 = 20, 21, 22, 23
    VC, VB, VT, VS, VWUV, VWO0, VWO1 = 24, 152, 184, 200, 208, 224, 152
    e(f"s_load_dwordx2 {sr(SCKV, 2)}, s[0:1], 8")
    e(f"s_sub_u32 {sr(S_W)}, {sr(S_W)}, 4")
    set_srd(SCKV, 8 << 20)
    e(f"v_mov_b32 {vr(T2)}, -1")
    e(f"v_mov_b32 {vr(T3)}, -1")
    e(f"s_mul_i32 {sr(S_T2)}, {sr(S_W)}, 320")
    e(f"s_add_u32 {sr(S_T2)}, {sr(S_T2)}, {QP}")
    e(f"v_min_u32 {vr(T1)}, 39, v0")
    e(f"v_lshl_add_u32 {vr(T1)}, {vr(T1)}, 3, {sr(S_T2)}")
    e(f"ds_write_b64 {vr(T1)}, {vr(T2, 2)}")
    e(f"v_mov_b32 {vr(T0)}, 0")
    e(f"v_and_b32 {vr(T1)}, 31, v0")
    e(f"v_lshlrev_b32 {vr(T1)}, 2, {vr(T1)}")
    e(f"v_add_u32 {vr(T1)}, {ZR}, {vr(T1)}")
    e(f"ds_write_b32 {vr(T1)}, {vr(T0)}")
    e(f"s_lshl3_add_u32 {sr(S_T)}, {sr(S_J)}, {sr(S_X)}")
    e(f"s_lshl_b32 {sr(S_T)}, {sr(S_T)}, 9")
    e(f"s_add_u32 {sr(S_T)}, {sr(S_T)}, {sr(S_W)}")
    e(f"s_lshl_b32 {sr(S_T)}, {sr(S_T)}, 8")
    e(f"v_lshlrev_b32 {vr(T0)}, 1, {vr(G)}")
    e(f"v_xor_b32 {vr(T0)}, {vr(T0)}, {vr(N)}")
    e(f"v_lshl_add_u32 {vr(T1)}, {vr(G)}, 10, {sr(S_T)}")
    e(f"v_lshl_add_u32 {vr(V_CG)}, {vr(T0)}, 4, {vr(T1)}")
    e(f"v_xor_b32 {vr(V_CG + 1)}, 0x1080, {vr(V_CG)}")
    e(f"s_lshl_b32 {sr(S_T2)}, {sr(S_W)}, 15")
    e(f"s_mov_b32 m0, {sr(S_T2)}")
    e(f"v_lshlrev_b32 {vr(T0)}, 1, {vr(N7)}")
    e(f"v_xor_b32 {vr(T0)}, {vr(T0)}, {vr(G)}")
    e(f"v_lshl_add_u32 {vr(T1)}, {vr(N)}, 8, {sr(S_T2)}")
    e(f"v_lshl_add_u32 {vr(V_SR)}, {vr(T0)}, 4, {vr(T1)}")
    for ks in range(1, 4):
        e(f"v_xor_b32 {vr(V_SR + ks)}, {ks << 6}, {vr(V_SR)}")
    assert CKV == 0
    e(f"s_mov_b32 {sr(S_T)}, 0")
    e("s_waitcnt lgkmcnt(0)")
    e.lg = []
    stamp("start")
    e(f"s_load_dword {sr(S_E)}, {sr(SWS, 2)}, {EPOCH}")
    e(f"s_load_dwordx2 {sr(SWUV, 2)}, s[0:1], 32")
    e(f"s_load_dwordx2 {sr(SWO, 2)}, s[0:1], 40")
    set_srd(SWUV, 4 << 20)
    set_srd(SWO, 4 << 20)
    for k, v in enumerate((0x10000, 0x20000, 0x30000, 0x1000, 0x8000, 0x9000)):
        e(f"s_mov_b32 {sr(S_K8 + k)}, {v}")
    e(f"v_lshrrev_b32 {vr(HB)}, 3, {vr(N)}")
    e(f"s_lshl_b32 {sr(S_P0)}, {sr(S_GAM)}, 5")
    e(f"s_add_u32 {sr(S_P0)}, {sr(S_P0)}, {sr(S_W)}")
    e(f"s_lshl_b32 {sr(S_P0)}, {sr(S_P0)}, 10")
    e(f"v_lshl_add_u32 {vr(V_GO)}, {vr(N7)}, 12, {sr(S_P0)}")
    e(f"v_lshl_add_u32 {vr(V_GO)}, {vr(HB)}, 6, {vr(V_GO)}")
    e(f"v_lshl_add_u32 {vr(V_GO)}, {vr(G)}, 4, {vr(V_GO)}")
    e(f"s_mul_i32 {sr(S_P0)}, {sr(S_W)}, 4224")
    e(f"s_add_u32 {sr(S_P0)}, {sr(S_P0)}, {XS}")
    e(f"v_mul_u32_u24 {vr(T0)}, 528, {vr(N7)}")
    e(f"v_lshl_add_u32 {vr(T0)}, {vr(HB)}, 7, {vr(T0)}")
    e(f"v_lshl_add_u32 {vr(T0)}, {vr(G)}, 4, {vr(T0)}")
    e(f"v_add_u32 {vr(V_XW)}, {sr(S_P0)}, {vr(T0)}")
    e(f"s_mul_i32 {sr(S_P0)}, {sr(S_W)}, 1056")
    e(f"s_add_u32 {sr(S_P0)}, {sr(S_P0)}, {XS}")
    e(f"v_lshrrev_b32 {vr(T3)}, 5, v0")
    e(f"v_add_u32 {vr(T0)}, {vr(T3)}, v0")
    e(f"v_lshl_add_u32 {vr(V_XR)}, {vr(T0)}, 4, {sr(S_P0)}")
    e(f"v_and_b32 {vr(T0)}, 1, {vr(G)}")
    e(f"v_lshrrev_b32 {vr(T1)}, 2, {vr(N7)}")
    e(f"v_lshl_add_u32 {vr(T0)}, {vr(T0)}, 1, {vr(T1)}")
    e(f"v_mul_u32_u24 {vr(T0)}, 544, {vr(T0)}")
    e(f"v_and_b32 {vr(T1)}, 1, v0")
    e(f"v_lshl_add_u32 {vr(T0)}, {vr(T1)}, 7, {vr(T0)}")
    e(f"v_and_b32 {vr(T1)}, 2, v0")
    e(f"v_mul_u32_u24 {vr(T1)}, 136, {vr(T1)}")
    e(f"v_add_u32 {vr(T0)}, {vr(T0)}, {vr(T1)}")
    e(f"v_lshl_add_u32 {vr(T0)}, {vr(T3)}, 4, {vr(T0)}")
    e(f"v_lshl_add_u32 {vr(T0)}, {vr(HB)}, 3, {vr(T0)}")
    e(f"s_lshl_b32 {sr(S_P0)}, {sr(S_W)}, 5")
    e(f"s_add_u32 {sr(S_P0)}, {sr(S_P0)}, {PB}")
    e(f"v_add_u32 {vr(V_PW)}, {sr(S_P0)}, {vr(T0)}")
    e(f"s_lshl2_add_u32 {sr(S_P0)}, {sr(S_GAM)}, {sr(S_W)}")
    e(f"s_lshl_b32 {sr(S_P0)}, {sr(S_P0)}, 11")
    e(f"s_lshl4_add_u32 {sr(S_P0)}, {sr(S_CP)}, {sr(S_P0)}")
    e(f"s_add_u32 {sr(S_P0)}, {sr(S_P0)}, {ML}")
    e(f"v_lshl_add_u32 {vr(T0)}, {vr(T3)}, 10, {sr(S_P0)}")
    e(f"v_mov_b32 {vr(T2)}, {OOB}")
    e(f"v_and_b32 {vr(T1)}, 31, v0")
    e(f"v_cmp_eq_u32 vcc, 0, {vr(T1)}")
    e(f"v_cndmask_b32 {vr(V_MLW)}, {vr(T2)}, {vr(T0)}, vcc")
    e(f"s_lshl2_add_u32 {sr(S_P0)}, {sr(S_CQ)}, {sr(S_W)}")
    e(f"s_lshl_b32 {sr(S_P0)}, {sr(S_P0)}, 18")
    e(f"s_add_u32 {sr(S_P0)}, {sr(S_P0)}, {sr(S_HD)}")
    e(f"v_lshl_add_u32 {vr(V_WUVO)}, {vr(L3)}, 13, {sr(S_P0)}")
    e(f"v_lshl_add_u32 {vr(V_WUVO)}, {vr(N7)}, 4, {vr(V_WUVO)}")
    e(f"s_lshl1_add_u32 {sr(S_P0)}, {sr(S_HD)}, {sr(S_W)}")
    e(f"s_lshl_b32 {sr(S_P0)}, {sr(S_P0)}, 8")
    e(f"v_lshl_add_u32 {vr(V_WOO)}, {vr(G)}, 13, {sr(S_P0)}")
    e(f"v_lshl_add_u32 {vr(V_WOO)}, {vr(N)}, 4, {vr(V_WOO)}")
    e("s_barrier   ; B0")
    stamp("B0")

    def uv_load(k):
        so = sr(S_K8 + k - 1) if k else "0"
        return f"buffer_load_dwordx4 {vr(VWUV + 4 * k, 4)}, {vr(V_WUVO)}, {srd(SWUV)}, {so} offen{NT('v')}", "wuv"

    def wo_load(s, jj):
        k = 2 * s + jj // 4
        so = sr(S_K8 + 2 + k) if k else "0"
        b = (VWO1 if s else VWO0) + 4 * jj
        return f"buffer_load_dwordx4 {vr(b, 4)}, {vr(V_WOO)}, {srd(SWO)}, {so} offen offset:{1024 * (jj & 3)}{NT('o')}", f"wo{s}"

    def tail_at(pos):
        ops = []
        if o["uv"] == pos:
            ops += [uv_load(k) for k in range(4)]
        for s in range(2):
            if o[f"o{s}"] == pos:
                ops += [wo_load(s, jj) for jj in range(8)]
        return ops

    def h2_loads():
        for kk in range(4):
            for par in range(2):
                e(f"buffer_load_dwordx4 {vr(VB + 8 * kk + 4 * par, 4)}, {vr(V_GO)}, {srd(SWS)}, 0 offen offset:{256 * kk + 128 * par} sc1")

    def s_reads(t):
        e.wait(vm=f"c{t}")
        for ks in range(4):
            e(f"ds_read_b128 {vr(VC + 16 * t + 4 * ks, 4)}, {vr(V_SR + ks)} offset:{4096 * t}", f"s{t}")

    nread = 0
    for i in range(32):
        e(f"buffer_load_dwordx4 {vr(V_CG + (i & 1))}, {srd(SCKV)}, {sr(S_T)} offen{NT('c')} lds", f"c{i // 4}")
        if i < 31:
            e("s_add_u32 m0, m0, 0x400")
            if i & 1:
                e(f"s_add_u32 {sr(S_T)}, {sr(S_T)}, 0x2000")
        if i == 3:
            e("s_waitcnt lgkmcnt(0)")
            make_tags()
        if i & 3 == 3 and i < 31 and i // 4 - o["lag"] >= nread:
            s_reads(nread)
            nread += 1
    stamp("dma")
    for op in tail_at("pre"):
        e(*op)
    h2_loads()
    for si, st in enumerate(stages):
        while nread < st:
            s_reads(nread)
            nread += 1
        e(f"s_barrier   ; Bc{si}")
    stamp("ckv")
    e.wait(vm="all")
    e.label("L_chk2")
    tag_check([VB + 8 * kk + 6 * par for kk in range(4) for par in range(2)], [T0, T1, T2, T3])
    poll_exit("2", h2_loads, 1)
    stamp("got2")
    prio(1)

    def s_fin(p):
        a = VT + 8 * (p & 1)
        d = VS + 4 * (p & 1)
        ops = []
        for hb in range(2):
            for r in range(4):
                ops.append((f"v_add_f32_dpp {vr(d + r)}, {vr(a + 4 * hb + r)}, {vr(a + 4 * hb + r)} row_ror:8 row_mask:0xf bank_mask:{'0xc' if hb else '0x3'}",))
        ops.append((f"ds_write_b128 {vr(V_XW)}, {vr(d, 4)} offset:{256 * (p >> 1) + 64 * (p & 1)}",))
        return ops

    tl = tail_at("S")
    per = (len(tl) + 3) // 4
    for p in range(4):
        fill = s_fin(p - 1) if p else []
        mine, tl = tl[:per], tl[per:]
        e.wait(lg=f"s{2 * p + 1}")
        for ks in range(4):
            for hb in range(2):
                a = VT + 8 * (p & 1) + 4 * hb
                c = vr(a, 4) if ks else "0"
                e(f"{MF} {vr(a, 4)}, {vr(VC + 16 * (2 * p + hb) + 4 * ks, 4)}, {vr(VB + 8 * ks + 2, 4)}, {c}   ; mfma16")
                k = 2 * ks + hb
                if k in (0, 1, 7) and mine:
                    e(*mine.pop(0))
                if k >= 2:
                    for z in range(2):
                        if fill:
                            e(*fill.pop(0))
        assert not mine and not fill
    for op in s_fin(3):
        e(*op)
    e.wait(lg="all")
    e("s_barrier   ; Bs")
    stamp("S")
    VXS, VMLD = 24, 40
    for wp in range(4):
        e(f"ds_read_b128 {vr(VXS + 4 * wp, 4)}, {vr(V_XR)} offset:{4224 * wp}", f"x{wp}")
    e(f"v_mov_b32 {vr(VMLD)}, {sr(S_TAG)}")
    e(f"v_mov_b32 {vr(VMLD + 1)}, {sr(S_TAG + 1)}")
    for wp in range(1, 4):
        e.wait(lg=f"x{wp}")
        for r in range(4):
            e(f"v_add_f32 {vr(VXS + r)}, {vr(VXS + r)}, {vr(VXS + 4 * wp + r)}")
    VM, VL = VMLD + 2, VMLD + 3
    e(f"v_max3_f32 {vr(VM)}, {vr(VXS)}, {vr(VXS + 1)}, {vr(VXS + 2)}")
    e(f"v_max_f32 {vr(VM)}, {vr(VM)}, {vr(VXS + 3)}")
    red_row("v_max_f32", VM)
    red_16("v_max_f32", VM, T0)
    for r in range(4):
        e(f"v_sub_f32 {vr(VXS + r)}, {vr(VXS + r)}, {vr(VM)}")
    for r in range(4):
        e(f"v_exp_f32 {vr(VXS + r)}, {vr(VXS + r)}")
    e(f"v_cvt_pk_bf16_f32 {vr(T2)}, {vr(VXS)}, {vr(VXS + 1)}")
    e(f"v_cvt_pk_bf16_f32 {vr(T3)}, {vr(VXS + 2)}, {vr(VXS + 3)}")
    e(f"ds_write_b64 {vr(V_PW)}, {vr(T2, 2)}")
    e(f"v_add_f32 {vr(VL)}, {vr(VXS)}, {vr(VXS + 1)}")
    e(f"v_add_f32 {vr(T0)}, {vr(VXS + 2)}, {vr(VXS + 3)}")
    e(f"v_add_f32 {vr(VL)}, {vr(VL)}, {vr(T0)}")
    e(f"v_mov_b32 {vr(T1)}, {GT}")
    e.wait(lg="all")
    prio(0)
    e("s_barrier   ; Bp")
    VGATE = 19
    e(f"ds_read_b32 {vr(VGATE)}, {vr(T1)}")
    red_row("v_add_f32", VL)
    red_16("v_add_f32", VL, T0)
    e(f"buffer_store_dwordx4 {vr(VMLD, 4)}, {vr(V_MLW)}, {srd(SWS)}, 0 offen sc1", "stm")
    stamp("pubm")
    for op in tail_at("P"):
        e(*op)
    V_UVW, V_UVR, V_H3O, V_MLO, V_CXW, V_CR1, V_CR2, V_H5O, V_FFR, VMASK = 6, 7, 8, 9, 10, 11, 12, 13, 14, 15
    e(f"s_mul_i32 {sr(S_T)}, {sr(S_W)}, {32 * 160}")
    e(f"v_mul_u32_u24 {vr(T0)}, 160, {vr(L3)}")
    e(f"v_lshl_add_u32 {vr(T0)}, {vr(N7)}, 4, {vr(T0)}")
    e(f"v_add_u32 {vr(V_UVW)}, {sr(S_T)}, {vr(T0)}")
    assert UV == 0
    e.wait(vm="wuv")
    for k in range(4):
        e(f"ds_write_b128 {vr(V_UVW)}, {vr(VWUV + 4 * k, 4)} offset:{1280 * k}")
    e(f"v_lshrrev_b32 {vr(T0)}, 2, v0")
    e(f"v_mul_u32_u24 {vr(T0)}, 160, {vr(T0)}")
    e(f"v_and_b32 {vr(T1)}, 3, v0")
    e(f"v_lshl_add_u32 {vr(V_UVR)}, {vr(T1)}, 3, {vr(T0)}")
    e(f"s_lshl2_add_u32 {sr(S_T)}, {sr(S_H)}, {sr(S_CQ)}")
    e(f"s_lshl2_add_u32 {sr(S_T)}, {sr(S_T)}, {sr(S_W)}")
    e(f"s_mul_i32 {sr(S_T)}, {sr(S_T)}, {16 * 384}")
    e(f"s_add_u32 {sr(S_T)}, {sr(S_T)}, {H3}")
    if o["h3pair"]:
        e(f"v_and_b32 {vr(T0)}, 14, v0")
        e(f"v_mul_u32_u24 {vr(V_H3O)}, 384, {vr(T0)}")
        e(f"v_and_b32 {vr(T0)}, 1, v0")
        e(f"v_lshl_add_u32 {vr(V_H3O)}, {vr(T0)}, 6, {vr(V_H3O)}")
    else:
        e(f"v_mul_u32_u24 {vr(V_H3O)}, 384, {vr(N)}")
    e(f"v_lshl_add_u32 {vr(V_H3O)}, {vr(G)}, 4, {vr(V_H3O)}")
    e(f"v_add_u32 {vr(V_H3O)}, {sr(S_T)}, {vr(V_H3O)}")
    e(f"s_lshl_b32 {sr(S_T)}, {sr(S_H)}, 10")
    e(f"s_add_u32 {sr(S_T)}, {sr(S_T)}, {ML}")
    e(f"v_lshrrev_b32 {vr(T3)}, 2, {vr(N)}")
    e(f"v_xor_b32 {vr(T0)}, {sr(S_W)}, {vr(T3)}")
    e(f"v_lshl_add_u32 {vr(T0)}, {vr(T0)}, 8, {sr(S_T)}")
    e(f"v_lshl_add_u32 {vr(T0)}, {vr(G)}, 6, {vr(T0)}")
    e(f"v_lshl_add_u32 {vr(V_MLO)}, {vr(T1)}, 4, {vr(T0)}")
    e(f"s_mul_i32 {sr(S_T)}, {sr(S_W)}, 160")
    e(f"s_add_u32 {sr(S_T)}, {sr(S_T)}, {CX}")
    e(f"v_lshl_add_u32 {vr(V_CXW)}, v0, 1, {sr(S_T)}")
    e(f"v_mul_u32_u24 {vr(T0)}, 160, {vr(T1)}")
    e(f"v_lshl_add_u32 {vr(T0)}, {vr(G)}, 4, {vr(T0)}")
    e(f"v_add_u32 {vr(T0)}, {CX}, {vr(T0)}")
    e(f"v_mov_b32 {vr(T2)}, {ZR}")
    e(f"v_cmp_eq_u32 vcc, 0, {vr(T3)}")
    e(f"v_cndmask_b32 {vr(V_CR1)}, {vr(T2)}, {vr(T0)}, vcc")
    e(f"v_cmp_eq_u32 vcc, 1, {vr(T3)}")
    e(f"v_cndmask_b32 {vr(V_CR2)}, {vr(T2)}, {vr(T0)}, vcc")
    e(f"s_lshl_b32 {sr(S_T)}, {sr(S_W)}, 17")
    e(f"s_lshl_b32 {sr(S_T2)}, s2, 6")
    e(f"s_add_u32 {sr(S_T)}, {sr(S_T)}, {sr(S_T2)}")
    e(f"s_add_u32 {sr(S_T)}, {sr(S_T)}, {H5}")
    e(f"v_lshrrev_b32 {vr(T0)}, 1, {vr(N)}")
    e(f"v_lshl_add_u32 {vr(T0)}, {vr(T0)}, 14, {sr(S_T)}")
    e(f"v_and_b32 {vr(T1)}, 1, v0")
    e(f"v_lshl_add_u32 {vr(T0)}, {vr(T1)}, 5, {vr(T0)}")
    e(f"v_lshl_add_u32 {vr(T0)}, {vr(G)}, 4, {vr(T0)}")
    e(f"v_mov_b32 {vr(T2)}, {OOB}")
    e("v_cmp_gt_u32 vcc, 32, v0")
    e(f"v_cndmask_b32 {vr(V_H5O)}, {vr(T2)}, {vr(T0)}, vcc")
    e(f"s_lshl_b32 {sr(S_T)}, {sr(S_W)}, 10")
    e(f"s_add_u32 {sr(S_T)}, {sr(S_T)}, {FF}")
    e(f"v_lshl_add_u32 {vr(V_FFR)}, v0, 4, {sr(S_T)}")
    e(f"v_mov_b32 {vr(VMASK)}, 0xfffff000")
    e(f"s_mov_b32 {sr(S_P0)}, 0x05040100")
    e(f"s_mov_b32 {sr(S_P0 + 1)}, 0x07060302")
    e.wait(lg="all")
    e("s_barrier   ; Bu")
    stamp("Bu")
    for op in tail_at("U"):
        e(*op)
    VOT, VUB, VD1, VY, VMLG, VCA, VGA, VFF = 24, 88, 184, 200, 204, 208, 224, 248

    def ml_loads():
        e(f"buffer_load_dwordx4 {vr(VMLG, 4)}, {vr(V_MLO)}, {srd(SWS)}, 0 offen sc1", "ml")

    def h3_loads():
        for hb in range(2):
            for k in range(3):
                e(f"buffer_load_dwordx4 {vr(VGA + 12 * hb + 4 * k, 4)}, {vr(V_H3O)}, {srd(SWS)}, 0 offen offset:{H3K * k + H3B * hb} sc1", "h3")

    def wo_transpose(s):
        e.wait(vm=f"wo{s}")
        b = VWO1 if s else VWO0
        for i in range(8):
            for t in range(4):
                lo = b + 4 * (2 * t) + i // 2
                hi = b + 4 * (2 * t + 1) + i // 2
                e(f"v_perm_b32 {vr(VOT + 32 * s + 4 * i + t)}, {vr(hi)}, {vr(lo)}, {sr(S_P0 + (i & 1))}")

    ml_loads()
    for it in range(4):
        for u in range(4):
            for a in range(2):
                e(f"ds_read_b64_tr_b16 {vr(VUB + 16 * it + 4 * u + 2 * a, 2)}, {vr(V_UVR)} offset:{(32 * u + 16 * a) * 160 + 32 * it}")
    wo_transpose(0)
    if o["o1"] == "P":
        wo_transpose(1)
    e.wait(vm="all")
    e.label("L_chkM")
    e(f"v_cmp_ne_u64 vcc, {sr(S_TAG, 2)}, {vr(VMLG, 2)}")
    poll_exit("M", ml_loads, 0x100)
    h3_loads()
    for op in tail_at("H"):
        e(*op)
    stamp("gotm")
    VM, VL, VWT = VMLG + 2, VMLG + 3, VMLG
    e(f"v_max_f32_dpp {vr(T0)}, {vr(VM)}, {vr(VM)} row_ror:8 {FULL}")
    red_row("v_max_f32", T0, (4, 2, 1))
    red_16("v_max_f32", T0, T1)
    red_32("v_max_f32", T0, T1)
    e(f"v_sub_f32 {vr(VWT)}, {vr(VM)}, {vr(T0)}")
    e(f"v_exp_f32 {vr(VWT)}, {vr(VWT)}")
    e(f"v_mul_f32 {vr(VL)}, {vr(VL)}, {vr(VWT)}")
    red_all("v_add_f32", VL, T1)
    e(f"v_rcp_f32 {vr(VL)}, {vr(VL)}")
    e(f"v_mul_f32 {vr(VWT)}, {vr(VWT)}, {vr(VGATE)}")
    e(f"v_mul_f32 {vr(VWT)}, {vr(VWT)}, {vr(VL)}")
    if o["o1"] == "U":
        wo_transpose(1)
    e.wait(vm="h3", lg="all")
    e.label("L_chk3")
    tag_check([VGA + 12 * hb + r for hb in range(2) for r in (3, 4, 10)], [T0, T1, T2])
    poll_exit("3", h3_loads, 0x10000)
    stamp("got3")
    for hb in range(2):
        e(f"v_mov_b32 {vr(VGA + 12 * hb + 3)}, {vr(VGA + 12 * hb + 5)}")

    def y_ops(it):
        ops = [f"v_mul_f32_dpp {vr(VY + it)}, {vr(VWT)}, {vr(VD1 + 4 * it)} row_newbcast:0 {FULL}"]
        for r in range(1, 4):
            ops.append(f"v_fmac_f32_dpp {vr(VY + it)}, {vr(VWT)}, {vr(VD1 + 4 * it + r)} row_newbcast:{r} {FULL}")
        return ops

    def zip2(a, b):
        return [x for pr in zip(a, b) for x in pr]

    for pr in range(2):
        fill = []
        if pr:
            fill = zip2(y_ops(0), y_ops(2)) + [f"v_permlane32_swap_b32 {vr(VY)}, {vr(VY + 2)}",
                                               f"v_add_f32 {vr(VY)}, {vr(VY)}, {vr(VY + 2)}"]
        for n_, u in enumerate((2, 3, 0, 1)):
            for z, it in enumerate((pr, pr + 2)):
                c = vr(VD1 + 4 * it, 4) if n_ else "0"
                a = VGA + 12 * (u & 1) + (6 if u >= 2 else 0)
                e(f"{MF} {vr(VD1 + 4 * it, 4)}, {vr(a, 4)}, {vr(VUB + 16 * it + 4 * u, 4)}, {c}   ; mfma16")
                if 2 * n_ + z >= 2:
                    for _ in range(2):
                        if fill:
                            e(fill.pop(0))
        assert not fill
    for op in zip2(y_ops(1), y_ops(3)):
        e(op)
    e(f"v_permlane32_swap_b32 {vr(VY + 1)}, {vr(VY + 3)}")
    e(f"v_add_f32 {vr(VY + 1)}, {vr(VY + 1)}, {vr(VY + 3)}")
    e(f"v_permlane16_swap_b32 {vr(VY)}, {vr(VY + 1)}")
    e(f"v_add_f32 {vr(VY)}, {vr(VY)}, {vr(VY + 1)}")
    e(f"v_cvt_pk_bf16_f32 {vr(VY)}, {vr(VY)}, {vr(VY)}")
    e(f"ds_write_b16 {vr(V_CXW)}, {vr(VY)}")
    e.wait(lg="all")
    e("s_barrier   ; B6")
    stamp("B6")
    for k in range(2):
        for s in range(2):
            e(f"ds_read_b128 {vr(VCA + 8 * k + 4 * s, 4)}, {vr(V_CR2 if k else V_CR1)} offset:{64 * s}", f"ca{k}{s}")
    e(f"ds_read_b128 {vr(VFF, 4)}, {vr(V_FFR)}", "ff")
    if o["o1"] == "H":
        wo_transpose(1)
    VDO = VD1

    def out_ops(i):
        d = VDO + 4 * i
        return [f"v_add_f32 {vr(d)}, {vr(d)}, {vr(d + 1)}",
                f"v_add_f32 {vr(d + 2)}, {vr(d + 2)}, {vr(d + 3)}",
                f"v_add_f32 {vr(VFF + i)}, {vr(VFF + i)}, {vr(d)}",
                f"v_add_f32 {vr(VFF + i)}, {vr(VFF + i)}, {vr(d + 2)}",
                f"v_add_u32 {vr(VFF + i)}, 0x800, {vr(VFF + i)}",
                f"v_and_or_b32 {vr(VFF + i)}, {vr(VFF + i)}, {vr(VMASK)}, {sr(S_TG5 + i)}"]

    for pr in range(2):
        fill = []
        if pr:
            e.wait(lg="ff")
            fill = zip2(out_ops(0), out_ops(1))
        for n_, (k, s) in enumerate(((0, 0), (0, 1), (1, 0), (1, 1))):
            e.wait(lg=f"ca{k}{s}")
            for z in range(2):
                i = 2 * pr + z
                c = vr(VDO + 4 * i, 4) if n_ else "0"
                e(f"{MF} {vr(VDO + 4 * i, 4)}, {vr(VCA + 8 * k + 4 * s, 4)}, {vr(VOT + 32 * s + 4 * (i + 4 * k), 4)}, {c}   ; mfma16")
                if 2 * n_ + z >= 2:
                    for _ in range(2):
                        if fill:
                            e(fill.pop(0))
        assert not fill
    for op in zip2(out_ops(2), out_ops(3)):
        e(op)
    e(f"buffer_store_dwordx4 {vr(VFF, 4)}, {vr(V_H5O)}, {srd(SWS)}, 0 offen sc1")
    stamp("pub5")
    e("s_barrier   ; B7")
    stamps_flush(4, "g1")
    e("s_endpgm")
    emit_retries()
    e.label("L_end")
    e("s_endpgm")

    ref = open(os.path.join(os.path.dirname(os.path.abspath(__file__)), "..", "cdna_kernels", NAME + ".s.ref")).read()
    head, rest = ref.split(f"{NAME}_kernel:\n", 1)
    tail = rest[rest.index(".section .rodata"):]
    head = head.replace("; @launch grid=(2,1,1) block=(256,1,1) lds=0",
                        f"; @launch grid=(256,1,1) block=(512,1,1) lds={LDS_BYTES}")
    return head + f"{NAME}_kernel:\n" + e.text().replace("   ; mfma16", "") + tail, e


STAMP_GROUPS = [("g0", slice(0, 4), slice(0, 224)), ("red", slice(0, 4), slice(224, 256)), ("g1", slice(4, 8), slice(0, 256))]


def check_intermediates(c, m, from_bf16, relerr, h3pair=0):
    import numpy as np
    sc = LOG2E / math.sqrt(128.0)
    h2 = c.read_ws(H2, 0x20000).reshape(32, 16, 2, 2, 4, 4)
    print("H2 tags distinct:", len(np.unique(h2[:, :, 0, :, :, 0])), len(np.unique(h2[:, :, 1, :, :, 2])))
    pay = np.concatenate([h2[:, :, 0, :, :, 2:], h2[:, :, 1, :, :, :2]], -1)
    qa = from_bf16(np.ascontiguousarray(pay.transpose(0, 2, 1, 3, 4)).view(np.uint16)).reshape(32, 2, 512)
    print("H2 rel", relerr(qa, m["qa_half"] * sc))
    kc_of = np.array([8 * (p & 7) + (p >> 3) for p in range(64)])
    ml = c.read_ws(ML, 0x8000).reshape(32, 64, 4)
    print("ML tags distinct:", len(np.unique(ml[..., 0])), len(np.unique(ml[..., 1])))
    mm = ml[..., 2].copy().view(np.float32)
    ll = ml[..., 3].copy().view(np.float32)
    s2 = (m["s"] * LOG2E).reshape(32, 64, 128)[:, kc_of]
    print("m rel", relerr(mm, s2.max(2)))
    p = np.exp2(s2 - mm[:, :, None])
    print("l rel", relerr(ll, p.sum(2)))
    op = np.einsum("hjk,jkc->hjc", p, m["ckv"].reshape(64, 128, 512)[kc_of])
    r3 = c.read_ws(H3, 0x300000)
    if h3pair:
        r3 = r3.reshape(32, 4, 32, 3, 2, 2, 4, 4).transpose(0, 1, 2, 5, 3, 4, 6, 7)
    r3 = r3.reshape(32, 4, 64, 3, 8, 4).transpose(0, 1, 2, 4, 3, 5).reshape(32, 4, 64, 8, 12)
    print("H3 tags distinct:", [len(np.unique(r3[..., i])) for i in (3, 4, 10, 11)])
    pay = np.ascontiguousarray(r3[..., [0, 1, 2, 5, 6, 7, 8, 9]])
    h3 = from_bf16(pay.view(np.uint16)).reshape(32, 4, 64, 128)
    idx = np.zeros(128, int)
    for sp in range(2):
        for hb in range(2):
            for g in range(4):
                for k in range(8):
                    idx[64 * hb + 16 * g + 8 * sp + k] = 64 * sp + 32 * hb + 16 * (k // 4) + 4 * g + (k & 3)
    exp3 = op.reshape(32, 64, 4, 128).transpose(0, 2, 1, 3)[..., idx]
    print("H3 rel", relerr(h3, exp3))
    hf = c.read_ws(HF, 172 * 1024).reshape(172, 32, 8)
    print("HF tags distinct:", [len(np.unique(hf[..., i::4] & 0xfff)) for i in range(4)])
    print("HF rel", relerr((hf & 0xfffff000).view(np.float32).astype(np.float64).sum(1).reshape(-1), m["pre"]))
    h5 = c.read_ws(H5, 0x80000).reshape(32, 256, 16)
    print("H5 tags distinct:", [len(np.unique(h5[..., i::4] & 0xfff)) for i in range(4)])
    tot = (h5 & 0xfffff000).view(np.float32).astype(np.float64).sum(1).reshape(512)
    print("H5 sum rel", relerr(tot, m["out"]))


if __name__ == "__main__":
    out = sys.argv[1]
    opt = {}
    for kv in sys.argv[2:]:
        k, v = kv.split("=")
        opt[k] = int(v) if v.lstrip("-").isdigit() else v
    txt, e = build(opt)
    open(out, "w").write(txt)
    print(f"{out}: {e.count} instructions, {e.nops} pad states, lds {LDS_BYTES}")
```
